```python
import torch

def _softmax(x, axis=-1):
    return torch.softmax(x, dim=axis)
def _gelu(x):
    return torch.nn.functional.gelu(x, approximate="tanh")
def _silu(x):
    return torch.nn.functional.silu(x)
def _sigmoid(x):
    return torch.sigmoid(x)
def _layernorm(x, axis=-1, eps=1e-5):
    m = x.mean(dim=axis, keepdim=True)
    v = x.var(dim=axis, keepdim=True, unbiased=False)
    return (x - m) / torch.sqrt(v + eps)
def _scatter_add(tgt, idx, src, axis=0):
    return tgt.clone().index_add_(axis, idx, src)
def _segment_sum(src, seg, n):
    out = torch.zeros((n,) + src.shape[1:], dtype=src.dtype)
    return out.index_add_(0, seg, src)
def _pad(x, pw):
    flat = tuple(v for pair in reversed(pw) for v in pair)
    return torch.nn.functional.pad(x, flat)

kernel_name = 'sequential_preLN__spectral_fnet__dense_activation_relu__prompt'

def setup_inputs():

    _w = (lambda a: (lambda t: t.to(torch.bfloat16) if t.is_floating_point() else t)(torch.as_tensor(a)))
    def _A_setup():
        B, S, D = 1, 2048, 1024
        ns = torch.arange(S)[:, None] * torch.arange(S)[None, :]
        nd = torch.arange(D)[:, None] * torch.arange(D)[None, :]
        Ws_re = torch.cos(-2.0 * torch.pi * ns / S).to(float)
        Ws_im = torch.sin(-2.0 * torch.pi * ns / S).to(float)
        Wd_re = torch.cos(-2.0 * torch.pi * nd / D).to(float)
        Wd_im = torch.sin(-2.0 * torch.pi * nd / D).to(float)
        return {
            "x": _w((lambda *s: torch.randn(*s, dtype=torch.bfloat16) * 0.05)(B, S, D)),
            "dft_seq_re": _w(Ws_re),
            "dft_seq_im": _w(Ws_im),
            "dft_hid_re": _w(Wd_re),
            "dft_hid_im": _w(Wd_im),
        }
    _A_in = _A_setup()

    def _B_setup():
        B, S, D, Dff = 1, 2048, 1024, 3584
        return {
            "x": _w((lambda *s: torch.randn(*s, dtype=torch.bfloat16) * 0.05)(B, S, D)),
            "w1": _w((lambda *s: torch.randn(*s, dtype=torch.bfloat16) * 0.4)(D, Dff)),
            "w2": _w((lambda *s: torch.randn(*s, dtype=torch.bfloat16) * 0.4)(Dff, D)),
        }
    _B_in = _B_setup()

    return {
        "A_x": _A_in["x"],
        "A_dft_seq_re": _A_in["dft_seq_re"],
        "A_dft_seq_im": _A_in["dft_seq_im"],
        "A_dft_hid_re": _A_in["dft_hid_re"],
        "A_dft_hid_im": _A_in["dft_hid_im"],
        "B_x": _B_in["x"],
        "B_w1": _B_in["w1"],
        "B_w2": _B_in["w2"],
    }

def reference(A_x, A_dft_seq_re, A_dft_seq_im, A_dft_hid_re, A_dft_hid_im, B_x, B_w1, B_w2):
    def _A_ref(x, dft_seq_re, dft_seq_im, dft_hid_re, dft_hid_im):
        a = torch.einsum("bsd,ed->bse", x, dft_hid_re)
        b = torch.einsum("bsd,ed->bse", x, dft_hid_im)
        y = torch.einsum("ts,bse->bte", dft_seq_re, a) - torch.einsum("ts,bse->bte", dft_seq_im, b)
        return y

    def _B_ref(x, w1, w2):
        h = torch.einsum("bsd,df->bsf", x, w1)
        zero = torch.zeros_like(h)
        h = torch.maximum(h, zero)
        return torch.einsum("bsf,fd->bsd", h, w2)

    x = A_x
    h = x + _A_ref(_layernorm(x, axis=-1), A_dft_seq_re, A_dft_seq_im, A_dft_hid_re, A_dft_hid_im)
    h2 = h + _B_ref(_layernorm(h, axis=-1), B_w1, B_w2)
    return h2
```

```python
class Asm:
    def __init__(self): self.lines = []
    def __call__(self, s): self.lines.append("    " + s)
    def label(self, l): self.lines.append(l + ":")
    def text(self): return "\n".join(self.lines) + "\n"

KARG = dict(x=0, ws_re=8, ws_im=16, wd_re=24, wd_im=32, bx=40, w1=48, w2=56, out=64, dbg=72, ws=80)

def srd(a, d, lo, hi, nrec):
    a(f"s_mov_b32 s{d}, s{lo}"); a(f"s_mov_b32 s{d+1}, s{hi}")
    a(f"s_mov_b32 s{d+2}, {nrec}"); a(f"s_mov_b32 s{d+3}, 0x00020000")

def interleave(mf, others, per_gap, start=0):
    out = []; oi = 0
    for i, m in enumerate(mf):
        out.append(m)
        if i >= start:
            n = per_gap(i) if callable(per_gap) else per_gap
            for _ in range(n):
                if oi < len(others): out.append(others[oi]); oi += 1
    out += others[oi:]
    return out

def emit_gemm(a, cfg):
    name = cfg['name']; BM, BN, WM, WN, NS = cfg['BM'], cfg['BN'], cfg['WM'], cfg['WN'], cfg['NS']
    wmode, omode = cfg['wmode'], cfg['out']
    WTM, WTN = BM // WM, BN // WN
    MB, NB = WTM // 16, WTN // 16
    XB = BM * 128; WB = BN * 128; ST = XB + WB
    NXI, NWI = BM // 32, BN // 32; D = NXI + NWI
    Q = BN // 8
    esz = 4 if omode == 'f32' else 2
    v = 1
    def alloc(n, al=1):
        nonlocal v
        v = (v + al - 1) // al * al
        r = v; v += n; return r
    vDX = alloc(NXI); vDW = alloc(NWI)
    vRX = alloc(2); vRW = alloc(2); vAX = alloc(2); vAW = alloc(2)
    vT = alloc(8, 2)
    vO = alloc(1)
    fX = [alloc(MB * 4, 4), alloc(MB * 4, 4)]
    fW = [alloc(NB * 4, 4), alloc(NB * 4, 4)]
    acc = alloc(MB * NB * 4, 4)
    nvgpr = v
    assert nvgpr <= 256, nvgpr
    L = lambda s: f"{name}_{s}"
    a.label(f"{name}_kernel")
    a(f"s_cmp_ge_u32 s2, {cfg['nwg']}")
    a(f"s_cbranch_scc1 {L('end')}")
    a("s_load_dwordx2 s[40:41], s[0:1], 80")
    cfg['setup'](a, L)
    srd(a, 8, 4, 5, 's42'); srd(a, 12, 6, 7, 's43'); srd(a, 16, 36, 37, 's44')
    if omode == 'res': srd(a, 20, 38, 39, 's44')
    t0, t1, t2, t3, t4, t5 = [vT + i for i in range(6)]
    a(f"v_lshrrev_b32 v{t0}, 6, v0")
    a(f"v_and_b32 v0, 63, v0")
    a(f"v_readfirstlane_b32 s29, v{t0}")
    a(f"v_lshrrev_b32 v{t1}, 3, v0")
    a(f"v_lshl_add_u32 v{t1}, v{t0}, 3, v{t1}")
    a(f"v_bfe_u32 v{t2}, v{t1}, 1, 3")
    a(f"v_and_b32 v{t3}, 7, v0")
    a(f"v_xor_b32 v{t2}, v{t2}, v{t3}")
    a(f"v_lshlrev_b32 v{t2}, 4, v{t2}")
    a(f"v_mul_lo_u32 v{t3}, v{t1}, s31")
    a(f"v_add_u32 v{vDX}, v{t3}, v{t2}")
    a(f"s_lshl_b32 s45, s31, 5")
    for i in range(1, NXI): a(f"v_add_u32 v{vDX+i}, s45, v{vDX+i-1}")
    if wmode == 'kc':
        a(f"v_mul_lo_u32 v{t3}, v{t1}, s32")
        a(f"v_add_u32 v{vDW}, v{t3}, v{t2}")
        a(f"s_lshl_b32 s45, s32, 5")
        for i in range(1, NWI): a(f"v_add_u32 v{vDW+i}, s45, v{vDW+i-1}")
        a("s_movk_i32 s34, 128")
    else:
        for i in range(NWI):
            a(f"v_lshl_add_u32 v{t1}, v{t0}, 6, v0")
            if i: a(f"v_add_u32 v{t1}, {256*i}, v{t1}")
            if Q == 8:
                a(f"v_lshrrev_b32 v{t2}, 3, v{t1}")
                a(f"v_and_b32 v{t3}, 7, v{t1}")
                a(f"v_and_b32 v{t4}, 2, v{t2}")
                a(f"v_bfe_u32 v{t5}, v{t2}, 3, 1")
                a(f"v_lshl_or_b32 v{t4}, v{t5}, 2, v{t4}")
            else:
                assert Q == 28
                a(f"v_mul_u32_u24 v{t2}, 2341, v{t1}")
                a(f"v_lshrrev_b32 v{t2}, 16, v{t2}")
                a(f"v_mul_u32_u24 v{t3}, 28, v{t2}")
                a(f"v_sub_u32 v{t3}, v{t1}, v{t3}")
                a(f"v_bfe_u32 v{t4}, v{t2}, 3, 1")
                a(f"v_lshlrev_b32 v{t4}, 1, v{t4}")
            a(f"v_xor_b32 v{t3}, v{t3}, v{t4}")
            a(f"v_mul_lo_u32 v{t2}, v{t2}, s32")
            a(f"v_lshl_add_u32 v{vDW+i}, v{t3}, 4, v{t2}")
        a("s_lshl_b32 s34, s32, 6")
    sh = {1: 0, 2: 1, 4: 2}[WN]
    a(f"s_lshr_b32 s46, s29, {sh}")
    a(f"s_and_b32 s47, s29, {WN-1}")
    a(f"v_and_b32 v{t1}, 15, v0")
    a(f"v_lshrrev_b32 v{t2}, 4, v0")
    a(f"v_lshrrev_b32 v{t3}, 1, v{t1}")
    a(f"v_xor_b32 v{t3}, v{t3}, v{t2}")
    a(f"v_lshlrev_b32 v{t3}, 4, v{t3}")
    a(f"v_lshl_add_u32 v{t3}, v{t1}, 7, v{t3}")
    a(f"s_mul_i32 s45, s46, {WTM*128}")
    a(f"v_add_u32 v{vRX}, s45, v{t3}")
    a(f"v_xor_b32 v{vRX+1}, 64, v{vRX}")
    if wmode == 'kc':
        a(f"s_mul_i32 s45, s47, {WTN*128}")
        a(f"s_add_u32 s45, s45, {XB}")
        a(f"v_add_u32 v{vRW}, s45, v{t3}")
        a(f"v_xor_b32 v{vRW+1}, 64, v{vRW}")
    else:
        a(f"v_lshrrev_b32 v{t3}, 2, v{t1}")
        a(f"v_lshl_add_u32 v{t4}, v{t2}, 3, v{t3}")
        if Q == 8:
            a(f"v_and_b32 v{t3}, 2, v{t3}")
            a(f"v_and_b32 v{t5}, 1, v{t2}")
            a(f"v_lshl_or_b32 v{t3}, v{t5}, 2, v{t3}")
        else:
            a(f"v_and_b32 v{t3}, 1, v{t2}")
            a(f"v_lshlrev_b32 v{t3}, 1, v{t3}")
        a(f"v_mul_u32_u24 v{t4}, {Q}, v{t4}")
        a(f"v_bfe_u32 v{t5}, v0, 1, 1")
        for par in range(2):
            a(f"s_mul_i32 s45, s47, {2*NB}")
            a(f"s_add_u32 s45, s45, {2*par}")
            a(f"v_add_u32 v{vRW+par}, s45, v{t5}")
            a(f"v_xor_b32 v{vRW+par}, v{vRW+par}, v{t3}")
            a(f"v_add_u32 v{vRW+par}, v{vRW+par}, v{t4}")
            a(f"v_lshlrev_b32 v{vRW+par}, 4, v{vRW+par}")
            a(f"v_and_b32 v{vT+6}, 1, v0")
            a(f"v_lshl_add_u32 v{vRW+par}, v{vT+6}, 3, v{vRW+par}")
            a(f"v_add_u32 v{vRW+par}, {XB}, v{vRW+par}")
    a(f"s_mul_i32 s45, s46, {WTM}")
    a(f"v_add_u32 v{t1}, s45, v{t1}")
    a(f"v_mul_lo_u32 v{vO}, v{t1}, s33")
    a(f"s_mul_i32 s45, s47, {WTN*esz}")
    a(f"v_lshlrev_b32 v{t2}, {2 + (2 if esz == 4 else 1)}, v{t2}")
    a(f"v_add3_u32 v{vO}, v{vO}, v{t2}, s45")
    for i in range(MB * NB * 4): a(f"v_mov_b32 v{acc+i}, 0")
    def dma_list():
        o = []
        for g in range(D):
            if g == 0: o.append("s_mov_b32 m0, s27")
            else: o.append("s_add_u32 m0, m0, 0x1000")
            if g < NXI: o.append(f"buffer_load_dwordx4 v{vDX+g}, s[8:11], s25 offen lds")
            else: o.append(f"buffer_load_dwordx4 v{vDW+g-NXI}, s[12:15], s26 offen lds")
        return o
    def dma_adv():
        return ["s_add_u32 s25, s25, 128", "s_add_u32 s26, s26, s34",
                f"s_add_u32 s27, s27, {ST}", f"s_cmp_ge_u32 s27, s48",
                f"s_cselect_b32 s49, {NS*ST}, 0", "s_sub_u32 s27, s27, s49"]
    a("s_mov_b32 s25, 0"); a("s_mov_b32 s26, 0")
    a("s_lshl_b32 s27, s29, 10")
    a(f"s_add_u32 s48, s27, {NS*ST}")
    for t in range(NS):
        l = dma_list()
        for i, x in enumerate(l):
            a(x)
            if i % 2 == 0: a("s_nop 0")
        for x in dma_adv(): a(x)
    def reads(ks, st):
        o = []
        for mb in range(MB): o.append(f"ds_read_b128 v[{fX[st]+4*mb}:{fX[st]+4*mb+3}], v{vAX+ks} offset:{mb*2048}")
        for nb in range(NB):
            r = fW[st] + 4 * nb
            if wmode == 'kc':
                o.append(f"ds_read_b128 v[{r}:{r+3}], v{vAW+ks} offset:{nb*2048}")
            else:
                for h in range(2):
                    o.append(f"ds_read_b64_tr_b16 v[{r+2*h}:{r+2*h+1}], v{vAW+(nb&1)} offset:{(32*ks+4*h)*Q*16+(nb>>1)*64}")
        return o
    def mfmas(st):
        o = []
        for nb in range(NB):
            for mb in range(MB):
                c = acc + (mb * NB + nb) * 4
                o.append(f"v_mfma_f32_16x16x32_bf16 v[{c}:{c+3}], v[{fW[st]+4*nb}:{fW[st]+4*nb+3}], v[{fX[st]+4*mb}:{fX[st]+4*mb+3}], v[{c}:{c+3}]")
        return o
    def addr_upd():
        return [f"v_add_u32 v{vAX}, s28, v{vRX}", f"v_add_u32 v{vAX+1}, s28, v{vRX+1}",
                f"v_add_u32 v{vAW}, s28, v{vRW}", f"v_add_u32 v{vAW+1}, s28, v{vRW+1}"]
    def rd_adv():
        return [f"s_add_u32 s28, s28, {ST}", f"s_cmp_ge_u32 s28, {NS*ST}",
                f"s_cselect_b32 s49, {NS*ST}, 0", "s_sub_u32 s28, s28, s49"]
    a("s_mov_b32 s28, 0")
    a(f"s_waitcnt vmcnt({(NS-1)*D})")
    a("s_barrier")
    for x in addr_upd(): a(x)
    for x in rd_adv(): a(x)
    for x in reads(0, 0): a(x)
    nm = MB * NB
    def body(do_dma, vm, last):
        a("s_waitcnt lgkmcnt(0)")
        rd = reads(1, 1)
        pg = max(1, -(-len(rd) // max(1, (nm * 2) // 3)))
        for x in interleave(mfmas(0), rd, pg): a(x)
        if last:
            a("s_waitcnt lgkmcnt(0)")
            for x in mfmas(1): a(x)
            return
        a(f"s_waitcnt vmcnt({vm}) lgkmcnt(0)")
        a("s_barrier")
        oth = addr_upd() + reads(0, 0) + rd_adv()
        if do_dma:
            l = dma_list()
            oth2 = l + dma_adv()
        else: oth2 = []
        mf = mfmas(1)
        for x in oth[:4]: a(x)
        oth = oth[4:]
        tot = len(oth) + len(oth2)
        pg = max(1, -(-tot // nm))
        seq = interleave(mf, oth + oth2, pg)
        fin = []
        for x in seq:
            if 'lds' in x and x.startswith('buffer_load') and fin and ' m0,' in fin[-1]:
                fin.append("s_nop 0")
            fin.append(x)
        for x in fin: a(x)
    a(f"s_sub_u32 s24, s24, {NS}")
    a("s_cmp_eq_u32 s24, 0")
    a(f"s_cbranch_scc1 {L('tail')}")
    a.label(L('loop'))
    body(True, (NS - 2) * D, False)
    a("s_sub_u32 s24, s24, 1")
    a("s_cmp_lg_u32 s24, 0")
    a(f"s_cbranch_scc1 {L('loop')}")
    a.label(L('tail'))
    for j in range(NS):
        body(False, (NS - 2 - j) * D if j < NS - 1 else 0, j == NS - 1)
    a("s_nop 7"); a("s_nop 1")
    a("s_lshl_b32 s45, s33, 4")
    a("s_mov_b32 s46, 0")
    fr = fX[0]
    if omode == 'res':
        rr = fX[0]
        assert MB * NB * 2 <= acc - fX[0]
        for mb in range(MB):
            for nb in range(NB):
                r = rr + (mb * NB + nb) * 2
                a(f"buffer_load_dwordx2 v[{r}:{r+1}], v{vO}, s[20:23], s46 offen offset:{nb*32}")
            a("s_add_u32 s46, s46, s45")
        a("s_mov_b32 s46, 0")
        a("s_waitcnt vmcnt(0)")
    for mb in range(MB):
        for nb in range(NB):
            c = acc + (mb * NB + nb) * 4
            if omode == 'f32':
                a(f"buffer_store_dwordx4 v[{c}:{c+3}], v{vO}, s[16:19], s46 offen offset:{nb*64}")
                continue
            if omode == 'relu':
                for i in range(4): a(f"v_max_f32 v{c+i}, 0, v{c+i}")
            if omode == 'res':
                r = rr + (mb * NB + nb) * 2
                a(f"v_lshlrev_b32 v{vT}, 16, v{r}"); a(f"v_and_b32 v{vT+1}, 0xffff0000, v{r}")
                a(f"v_lshlrev_b32 v{vT+2}, 16, v{r+1}"); a(f"v_and_b32 v{vT+3}, 0xffff0000, v{r+1}")
                for i in range(4): a(f"v_add_f32 v{c+i}, v{c+i}, v{vT+i}")
            a(f"v_cvt_pk_bf16_f32 v{c}, v{c}, v{c+1}")
            a(f"v_cvt_pk_bf16_f32 v{c+1}, v{c+2}, v{c+3}")
            a(f"buffer_store_dwordx2 v[{c}:{c+1}], v{vO}, s[16:19], s46 offen offset:{nb*32}")
        a("s_add_u32 s46, s46, s45")
    a.label(L('end'))
    a("s_endpgm")
    return nvgpr, NS * ST
```

```python
from gemm import srd
MB_ = 1 << 20
WS = dict(EE=0, OO=2*MB_, GT=4*MB_, HT=6*MB_, P=8*MB_, Q=12*MB_, HN=16*MB_, H=20*MB_, H1=24*MB_)

def wave_sum(a, regs):
    steps = ["row_shr:1 row_mask:0xf bank_mask:0xf bound_ctrl:0", "row_shr:2 row_mask:0xf bank_mask:0xf bound_ctrl:0",
             "row_shr:4 row_mask:0xf bank_mask:0xf bound_ctrl:0", "row_shr:8 row_mask:0xf bank_mask:0xf bound_ctrl:0",
             "row_bcast:15 row_mask:0xa bank_mask:0xf", "row_bcast:31 row_mask:0xc bank_mask:0xf"]
    for s in steps:
        a("s_nop 1")
        for r in regs: a(f"v_add_f32_dpp v{r}, v{r}, v{r} {s}")
    a("s_nop 1")

def unpack(a, dst, src, n):
    for i in range(n):
        a(f"v_and_b32 v{dst+2*i+1}, 0xffff0000, v{src+i}")
        a(f"v_lshlrev_b32 v{dst+2*i}, 16, v{src+i}")

def tree_sum(a, dst, regs):
    a(f"v_add_f32 v{dst}, v{regs[0]}, v{regs[1]}")
    for r in regs[2:]: a(f"v_add_f32 v{dst}, v{dst}, v{r}")

def ln_stats(a, rows, tmp, smean, srstd):
    n = len(rows)
    for j, r in enumerate(rows):
        a(f"v_add_f32 v{tmp+j}, v{r[0]}, v{r[1]}")
        for x in r[2:]: a(f"v_add_f32 v{tmp+j}, v{tmp+j}, v{x}")
    wave_sum(a, [tmp + j for j in range(n)])
    for j in range(n): a(f"v_readlane_b32 s{smean+j}, v{tmp+j}, 63")
    a("s_nop 1")
    for j in range(n):
        a(f"v_mov_b32 v{tmp+j}, s{smean+j}")
        a(f"v_mul_f32 v{tmp+j}, 0x3a800000, v{tmp+j}")
    for j, r in enumerate(rows):
        for x in r: a(f"v_sub_f32 v{x}, v{x}, v{tmp+j}")
    for j, r in enumerate(rows):
        a(f"v_mul_f32 v{tmp+j}, v{r[0]}, v{r[0]}")
        for x in r[1:]: a(f"v_fmac_f32 v{tmp+j}, v{x}, v{x}")
    wave_sum(a, [tmp + j for j in range(n)])
    for j in range(n): a(f"v_readlane_b32 s{srstd+j}, v{tmp+j}, 63")
    a("s_nop 1")
    for j in range(n):
        a(f"v_mov_b32 v{tmp+j}, s{srstd+j}")
        a(f"v_mul_f32 v{tmp+j}, 0x3a800000, v{tmp+j}")
        a(f"v_add_f32 v{tmp+j}, 0x3727c5ac, v{tmp+j}")
        a(f"v_rsq_f32 v{tmp+j}, v{tmp+j}")
    a("s_nop 0")
    for j, r in enumerate(rows):
        for x in r: a(f"v_mul_f32 v{x}, v{x}, v{tmp+j}")

def emit_prep(a):
    a.label("prep_kernel")
    a("s_cmp_ge_u32 s2, 272"); a("s_cbranch_scc1 prep_end")
    a("s_load_dwordx2 s[4:5], s[0:1], 0"); a("s_load_dwordx2 s[6:7], s[0:1], 80")
    a("v_lshrrev_b32 v1, 6, v0"); a("v_and_b32 v0, 63, v0")
    a("v_readfirstlane_b32 s3, v1")
    a("s_lshl_b32 s20, s2, 2"); a("s_add_u32 s20, s20, s3")
    a("s_waitcnt lgkmcnt(0)")
    srd(a, 8, 4, 5, 4 * MB_)
    a("s_mul_i32 s21, s20, 1152")
    a("s_add_u32 s12, s6, s21"); a("s_addc_u32 s13, s7, 0")
    a("s_mov_b32 s14, 1152"); a("s_mov_b32 s15, 0x00020000")
    a("s_lshl_b32 s21, s20, 10"); a(f"s_add_u32 s21, s21, {WS['OO']}")
    a("s_add_u32 s16, s6, s21"); a("s_addc_u32 s17, s7, 0")
    a("s_mov_b32 s18, 1024"); a("s_mov_b32 s19, 0x00020000")
    a("v_lshlrev_b32 v1, 4, v0")
    a("s_cmp_ge_u32 s20, 1025"); a("s_cbranch_scc1 prep_zero")
    a("s_sub_u32 s22, 2048, s20"); a("s_and_b32 s22, s22, 2047")
    a("s_lshl_b32 s23, s20, 11"); a("s_lshl_b32 s24, s22, 11")
    a("v_sub_u32 v2, 2032, v1")
    a("v_sub_u32 v3, 2048, v1")
    a("buffer_load_dwordx4 v[4:7], v1, s[8:11], s23 offen")
    a("buffer_load_dwordx4 v[8:11], v2, s[8:11], s23 offen")
    a("buffer_load_dwordx4 v[12:15], v1, s[8:11], s24 offen")
    a("buffer_load_dwordx4 v[16:19], v2, s[8:11], s24 offen")
    a("v_add_u32 v22, s23, v3"); a("v_add_u32 v23, s24, v3")
    a("buffer_load_ushort v20, v22, s[8:11], 0 offen")
    a("buffer_load_ushort v21, v23, s[8:11], 0 offen")
    a("s_waitcnt vmcnt(0)")
    A1, B1, A2, B2 = 24, 32, 40, 48
    unpack(a, A1, 4, 4); unpack(a, B1, 8, 4); unpack(a, A2, 12, 4); unpack(a, B2, 16, 4)
    a("v_lshlrev_b32 v20, 16, v20"); a("v_lshlrev_b32 v21, 16, v21")
    r1 = list(range(A1, A1 + 16)); r2 = list(range(A2, A2 + 16))
    ln_stats(a, [r1, r2], 56, 26, 28)
    for j, c in enumerate([20, 21]):
        a(f"v_mov_b32 v58, s{26+j}")
        a(f"v_mul_f32 v58, 0x3a800000, v58")
        a(f"v_sub_f32 v{c}, v{c}, v58")
        a(f"v_mul_f32 v{c}, v{c}, v{56+j}")
    a("v_cmp_eq_u32 vcc, 0, v0"); a("s_nop 1")
    a("v_cndmask_b32 v20, v20, 0, vcc") if False else None
    a("v_mov_b32 v58, 0")
    a("v_cndmask_b32 v20, v20, v58, vcc"); a("v_cndmask_b32 v21, v21, v58, vcc")
    a("s_cmp_eq_u32 s20, s22"); a("s_cselect_b32 s25, 0, 1.0")
    for i in range(8):
        m1 = 20 if i == 0 else B1 + 8 - i
        m2 = 21 if i == 0 else B2 + 8 - i
        a(f"v_add_f32 v76, v{A1+i}, v{m1}"); a(f"v_sub_f32 v77, v{A1+i}, v{m1}")
        a(f"v_add_f32 v78, v{A2+i}, v{m2}"); a(f"v_sub_f32 v79, v{A2+i}, v{m2}")
        a(f"v_fma_f32 v{60+i}, s25, v78, v76"); a(f"v_sub_f32 v{68+i}, v77, v79")
    for i in range(4):
        a(f"v_cvt_pk_bf16_f32 v{80+i}, v{60+2*i}, v{61+2*i}")
        a(f"v_cvt_pk_bf16_f32 v{84+i}, v{68+2*i}, v{69+2*i}")
    a("buffer_store_dwordx4 v[80:83], v1, s[12:15], 0 offen")
    a("s_cmp_ge_u32 s20, 1024"); a("s_cbranch_scc1 prep_noO")
    a("buffer_store_dwordx4 v[84:87], v1, s[16:19], 0 offen")
    a.label("prep_noO")
    a(f"v_fma_f32 v76, s25, v{B2}, v{B1}"); a("s_nop 1")
    a("v_readlane_b32 s28, v76, 63"); a("s_nop 1")
    a("v_mov_b32 v76, s28"); a("v_cvt_pk_bf16_f32 v76, v76, v58")
    a("v_cndmask_b32 v88, v58, v76, vcc")
    a("v_mov_b32 v89, 0"); a("v_mov_b32 v90, 0"); a("v_mov_b32 v91, 0")
    a("buffer_store_dwordx4 v[88:91], v1, s[12:15], 0 offen offset:1024")
    a("s_endpgm")
    a.label("prep_zero")
    for i in range(4): a(f"v_mov_b32 v{4+i}, 0")
    a("buffer_store_dwordx4 v[4:7], v1, s[12:15], 0 offen")
    a("buffer_store_dwordx4 v[4:7], v1, s[12:15], 0 offen offset:1024")
    a.label("prep_end")
    a("s_endpgm")
    return 96

def emit_ln2(a):
    a.label("ln2_kernel")
    a("s_cmp_ge_u32 s2, 512"); a("s_cbranch_scc1 ln2_end")
    a("s_load_dwordx2 s[4:5], s[0:1], 0"); a("s_load_dwordx2 s[6:7], s[0:1], 80")
    a("v_lshrrev_b32 v1, 6, v0"); a("v_and_b32 v0, 63, v0")
    a("v_readfirstlane_b32 s3, v1")
    a("s_lshl_b32 s20, s2, 2"); a("s_add_u32 s20, s20, s3")
    a("s_sub_u32 s21, 2048, s20"); a("s_cmp_le_u32 s20, 1024")
    a("s_cselect_b32 s22, s20, s21")
    a("s_cselect_b32 s23, 1.0, -1.0")
    a("s_waitcnt lgkmcnt(0)")
    a("s_lshl_b32 s24, s20, 11")
    a("s_add_u32 s8, s4, s24"); a("s_addc_u32 s9, s5, 0"); a("s_mov_b32 s10, 2048"); a("s_mov_b32 s11, 0x00020000")
    a("s_mul_i32 s25, s22, 2304"); a(f"s_add_u32 s25, s25, {WS['P']}")
    a("s_add_u32 s12, s6, s25"); a("s_addc_u32 s13, s7, 0"); a("s_mov_b32 s14, 2304"); a("s_mov_b32 s15, 0x00020000")
    a("s_lshl_b32 s25, s22, 11"); a(f"s_add_u32 s25, s25, {WS['Q']}")
    a("s_add_u32 s16, s6, s25"); a("s_addc_u32 s17, s7, 0"); a("s_mov_b32 s18, 2048"); a("s_mov_b32 s19, 0x00020000")
    a(f"s_add_u32 s25, s24, {WS['H']}")
    a("s_add_u32 s28, s6, s25"); a("s_addc_u32 s29, s7, 0"); a("s_mov_b32 s30, 2048"); a("s_mov_b32 s31, 0x00020000")
    a(f"s_add_u32 s25, s24, {WS['HN']}")
    a("s_add_u32 s32, s6, s25"); a("s_addc_u32 s33, s7, 0"); a("s_mov_b32 s34, 2048"); a("s_mov_b32 s35, 0x00020000")
    a("v_lshlrev_b32 v1, 4, v0")
    a("v_lshlrev_b32 v2, 5, v0")
    a("v_sub_u32 v3, 2020, v2")
    a("buffer_load_dwordx4 v[4:7], v1, s[8:11], 0 offen")
    a("buffer_load_dwordx4 v[8:11], v1, s[8:11], 0 offen offset:1024")
    PA, QA, PB, QB = 12, 20, 28, 36
    a(f"buffer_load_dwordx4 v[{PA}:{PA+3}], v2, s[12:15], 0 offen")
    a(f"buffer_load_dwordx4 v[{PA+4}:{PA+7}], v2, s[12:15], 0 offen offset:16")
    a(f"buffer_load_dwordx4 v[{QA}:{QA+3}], v2, s[16:19], 0 offen")
    a(f"buffer_load_dwordx4 v[{QA+4}:{QA+7}], v2, s[16:19], 0 offen offset:16")
    a(f"buffer_load_dwordx4 v[{PB}:{PB+3}], v3, s[12:15], 0 offen")
    a(f"buffer_load_dwordx4 v[{PB+4}:{PB+7}], v3, s[12:15], 0 offen offset:16")
    a(f"buffer_load_dwordx4 v[{QB}:{QB+3}], v3, s[16:19], 0 offen")
    a(f"buffer_load_dwordx3 v[{QB+4}:{QB+6}], v3, s[16:19], 0 offen offset:16")
    a(f"buffer_load_dword v{QB+7}, v3, s[16:19], 0 offen offset:28")
    a("s_waitcnt vmcnt(0)")
    XA, XB = 44, 52
    unpack(a, XA, 4, 4); unpack(a, XB, 8, 4)
    HH = 60
    for i in range(8):
        a(f"v_fma_f32 v{PA+i}, -v{QA+i}, s23, v{PA+i}")
        a(f"v_fma_f32 v{PB+i}, v{QB+i}, s23, v{PB+i}")
    for i in range(8):
        a(f"v_add_f32 v{HH+i}, v{XA+i}, v{PA+i}")
        a(f"v_add_f32 v{HH+8+i}, v{XB+i}, v{PB+7-i}")
    for i in range(8): a(f"v_cvt_pk_bf16_f32 v{76+i}, v{HH+2*i}, v{HH+2*i+1}")
    a("buffer_store_dwordx4 v[76:79], v1, s[28:31], 0 offen")
    a("buffer_store_dwordx4 v[80:83], v1, s[28:31], 0 offen offset:1024")
    unpack(a, HH, 76, 8)
    ln_stats(a, [list(range(HH, HH + 16))], 84, 26, 27)
    for i in range(8): a(f"v_cvt_pk_bf16_f32 v{88+i}, v{HH+2*i}, v{HH+2*i+1}")
    a("buffer_store_dwordx4 v[88:91], v1, s[32:35], 0 offen")
    a("buffer_store_dwordx4 v[92:95], v1, s[32:35], 0 offen offset:1024")
    a.label("ln2_end")
    a("s_endpgm")
    return 96
```

```python
import sys, os
from gemm import Asm, emit_gemm, KARG
from rowk import emit_prep, emit_ln2, WS, MB_
NAME = "sequential_preLN__spectral_fnet__dense_activation_relu__prompt"

def add64(a, d, b, off):
    a(f"s_add_u32 s{d}, s{b}, {off}"); a(f"s_addc_u32 s{d+1}, s{b+1}, 0")

def divmod_c(a, q, r, x, d):
    m = -(-65536 // d)
    a(f"s_mul_i32 s{q}, s{x}, {m}"); a(f"s_lshr_b32 s{q}, s{q}, 16")
    a(f"s_mul_i32 s{r}, s{q}, {d}"); a(f"s_sub_u32 s{r}, s{x}, s{r}")

def small_setup(probs, BM, BN, esz):
    def f(a, L):
        p0, p1 = probs
        a(f"s_cmp_ge_u32 s2, {p0['n']}")
        a(f"s_cbranch_scc1 {L('p1')}")
        for i, p in enumerate(probs):
            if i == 1:
                a.label(L('p1'))
                a(f"s_sub_u32 s2, s2, {p0['n']}")
            if p['X'][0] is not None: a(f"s_load_dwordx2 s[4:5], s[0:1], {KARG[p['X'][0]]}")
            if p['W'][0] is not None: a(f"s_load_dwordx2 s[6:7], s[0:1], {KARG[p['W'][0]]}")
            divmod_c(a, 50, 51, 2, p['nN'])
            a(f"s_mov_b32 s31, {p['ldx']}"); a(f"s_mov_b32 s32, {p['ldw']}"); a(f"s_mov_b32 s33, {p['ldo']}")
            a(f"s_mov_b32 s24, {p['KT']}")
            a("s_waitcnt lgkmcnt(0)")
            a(f"s_mul_i32 s52, s50, {BM*p['ldx']}")
            a(f"s_sub_u32 s42, {p['xsize']}, s52")
            if p['X'][0] is None:
                a(f"s_add_u32 s52, s52, {p['X'][1]}"); add64(a, 4, 40, "s52")
            else: add64(a, 4, 4, "s52")
            a(f"s_mul_i32 s52, s51, {BN*p['ldw']}")
            a(f"s_sub_u32 s43, {p['wsize']}, s52")
            if p['W'][0] is None:
                a(f"s_add_u32 s52, s52, {p['W'][1]}"); add64(a, 6, 40, "s52")
            else: add64(a, 6, 6, "s52")
            a(f"s_mul_i32 s52, s50, {BM*p['ldo']}")
            a(f"s_mul_i32 s53, s51, {BN*esz}")
            a("s_add_u32 s52, s52, s53")
            a(f"s_sub_u32 s44, {p['osize']}, s52")
            a(f"s_add_u32 s52, s52, {p['O']}"); add64(a, 36, 40, "s52")
            if i == 0: a(f"s_branch {L('go')}")
        a.label(L('go'))
    return f

def big_setup(which):
    def f(a, L):
        a("s_and_b32 s50, s2, 7"); a("s_lshr_b32 s51, s2, 3")
        if which == 1:
            a("s_and_b32 s52, s50, 1"); a("s_lshl_b32 s52, s52, 3"); a("s_and_b32 s53, s51, 7"); a("s_add_u32 s54, s52, s53")
            a("s_lshr_b32 s52, s50, 1"); a("s_lshl_b32 s52, s52, 2"); a("s_lshr_b32 s53, s51, 3"); a("s_add_u32 s55, s52, s53")
            BM, BN, ldx, ldw, ldo, KT = 128, 224, 2048, 7168, 7168, 16
            a(f"s_load_dwordx2 s[6:7], s[0:1], {KARG['w1']}")
            xoff, xsz, wsz, osz = WS['HN'], 4 * MB_, 1024 * 7168, 2048 * 7168
        else:
            a("s_and_b32 s52, s50, 3"); a("s_lshl_b32 s52, s52, 2"); a("s_and_b32 s53, s51, 3"); a("s_add_u32 s54, s52, s53")
            a("s_lshr_b32 s52, s50, 2"); a("s_lshl_b32 s52, s52, 3"); a("s_lshr_b32 s53, s51, 2"); a("s_add_u32 s55, s52, s53")
            BM, BN, ldx, ldw, ldo, KT = 128, 64, 7168, 2048, 2048, 56
            a(f"s_load_dwordx2 s[6:7], s[0:1], {KARG['w2']}")
            a(f"s_load_dwordx2 s[36:37], s[0:1], {KARG['out']}")
            xoff, xsz, wsz, osz = WS['H1'], 2048 * 7168, 3584 * 2048, 4 * MB_
        a(f"s_mov_b32 s31, {ldx}"); a(f"s_mov_b32 s32, {ldw}"); a(f"s_mov_b32 s33, {ldo}"); a(f"s_mov_b32 s24, {KT}")
        a("s_waitcnt lgkmcnt(0)")
        a(f"s_mul_i32 s52, s54, {BM*ldx}"); a(f"s_sub_u32 s42, {xsz}, s52")
        a(f"s_add_u32 s52, s52, {xoff}"); add64(a, 4, 40, "s52")
        a(f"s_mul_i32 s52, s55, {BN*2}"); a(f"s_sub_u32 s43, {wsz}, s52"); add64(a, 6, 6, "s52")
        a(f"s_mul_i32 s52, s54, {BM*ldo}"); a(f"s_mul_i32 s53, s55, {BN*2}"); a("s_add_u32 s52, s52, s53")
        a(f"s_sub_u32 s44, {osz}, s52")
        if which == 1:
            a(f"s_add_u32 s52, s52, {WS['H1']}"); add64(a, 36, 40, "s52")
        else:
            add64(a, 36, 36, "s52")
            a(f"s_add_u32 s52, s52, {WS['H']}"); add64(a, 38, 40, "s52")
    return f

def kernel_wrap(name, body, nv):
    nvr = (nv + 7) // 8 * 8
    hdr = f".globl {name}\n.p2align 8\n.type {name},@function\n"
    desc = f""".amdhsa_kernel {name}
  .amdhsa_next_free_vgpr {nvr}
  .amdhsa_next_free_sgpr 64
  .amdhsa_accum_offset {max(4,(nvr+3)//4*4)}
  .amdhsa_group_segment_fixed_size 0
  .amdhsa_kernarg_size 88
  .amdhsa_user_sgpr_count 2
  .amdhsa_user_sgpr_kernarg_segment_ptr 1
  .amdhsa_system_sgpr_workgroup_id_x 1
.end_amdhsa_kernel
"""
    return hdr + body, desc

def build(opts):
    ks = []
    a = Asm(); nv = emit_prep(a); ks.append(("prep_kernel", a.text(), nv, 272, 0))
    NSs = opts.get('NSs', 4)
    pa = [dict(n=102, nN=17, X=('wd_re', 0), ldx=2048, xsize=2*MB_, W=(None, WS['EE']), ldw=1152, wsize=1088*1152, O=WS['GT'], ldo=2176, osize=576*2176, KT=9),
          dict(n=96, nN=16, X=('wd_im', 0), ldx=2048, xsize=2*MB_, W=(None, WS['OO']), ldw=1024, wsize=1024*1024, O=WS['HT'], ldo=2048, osize=576*2048, KT=8)]
    a = Asm(); nv, lds = emit_gemm(a, dict(name='ga', BM=96, BN=64, WM=2, WN=2, NS=NSs, wmode='kc', out='bf16', nwg=198, setup=small_setup(pa, 96, 64, 2)))
    ks.append(("ga_kernel", a.text(), nv, 198, lds))
    pb = [dict(n=99, nN=9, X=('ws_re', 0), ldx=4096, xsize=8*MB_, W=(None, WS['GT']), ldw=2176, wsize=576*2176, O=WS['P'], ldo=2304, osize=1056*2304, KT=17),
          dict(n=88, nN=8, X=('ws_im', 0), ldx=4096, xsize=8*MB_, W=(None, WS['HT']), ldw=2048, wsize=576*2048, O=WS['Q'], ldo=2048, osize=1056*2048, KT=16)]
    a = Asm(); nv, lds = emit_gemm(a, dict(name='gb', BM=96, BN=64, WM=2, WN=2, NS=NSs, wmode='kc', out='f32', nwg=187, setup=small_setup(pb, 96, 64, 4)))
    ks.append(("gb_kernel", a.text(), nv, 187, lds))
    a = Asm(); nv = emit_ln2(a); ks.append(("ln2_kernel", a.text(), nv, 512, 0))
    a = Asm(); nv, lds = emit_gemm(a, dict(name='g1', BM=128, BN=224, WM=2, WN=2, NS=3, wmode='nc', out='relu', nwg=256, setup=big_setup(1)))
    ks.append(("g1_kernel", a.text(), nv, 256, lds))
    a = Asm(); nv, lds = emit_gemm(a, dict(name='g2', BM=128, BN=64, WM=2, WN=2, NS=opts.get('NS2', 6), wmode='nc', out='res', nwg=256, setup=big_setup(2)))
    ks.append(("g2_kernel", a.text(), nv, 256, lds))
    sel = opts.get('only')
    ref = open(f"cdna_kernels/{NAME}.s.ref").read().split("\n")
    hdr = [l for l in ref if l.startswith(";") and "@launch" not in l and "Override" not in l and "grid=ceil" not in l]
    hdr = hdr[:12]
    out = "\n".join(hdr) + "\n"
    for (n, _, nv, g, lds) in ks:
        if sel and n not in sel: continue
        out += f"; @launch kernel={n} grid=({g},1,1) block=({512 if n in ('ga_kernel','gb_kernel','g1_kernel','g2_kernel') else 256},1,1) lds={lds}\n"
    out += '.amdgcn_target "amdgcn-amd-amdhsa--gfx950"\n.text\n'
    descs = ""
    for (n, body, nv, g, lds) in ks:
        t, d = kernel_wrap(n, body, nv); out += t; descs += d.replace(".amdhsa_kernel", ".p2align 6\n.amdhsa_kernel", 1)
    out += '.section .rodata,"a"\n' + descs
    return out

if __name__ == "__main__":
    opts = {}
    for x in sys.argv[2:]:
        k, v = x.split("=")
        opts[k] = v.split(",") if k == 'only' else int(v)
    open(sys.argv[1], "w").write(build(opts))
```

```python
class Asm:
    def __init__(self): self.lines = []
    def __call__(self, s): self.lines.append("    " + s)
    def label(self, l): self.lines.append(l + ":")
    def text(self): return "\n".join(self.lines) + "\n"

KARG = dict(x=0, ws_re=8, ws_im=16, wd_re=24, wd_im=32, bx=40, w1=48, w2=56, out=64, dbg=72, ws=80)

def srd(a, d, lo, hi, nrec):
    a(f"s_mov_b32 s{d}, s{lo}"); a(f"s_mov_b32 s{d+1}, s{hi}")
    a(f"s_mov_b32 s{d+2}, {nrec}"); a(f"s_mov_b32 s{d+3}, 0x00020000")

def interleave(mf, others, per_gap, start=0):
    out = []; oi = 0
    for i, m in enumerate(mf):
        out.append(m)
        if i >= start:
            n = per_gap(i) if callable(per_gap) else per_gap
            for _ in range(n):
                if oi < len(others): out.append(others[oi]); oi += 1
    out += others[oi:]
    return out

def emit_gemm(a, cfg):
    name = cfg['name']; BM, BN, WM, WN, NS = cfg['BM'], cfg['BN'], cfg['WM'], cfg['WN'], cfg['NS']
    wmode, omode = cfg['wmode'], cfg['out']
    WTM, WTN = BM // WM, BN // WN
    MB, NB = WTM // 16, WTN // 16
    XB = BM * 128; WB = BN * 128; ST = XB + WB
    NXI, NWI = BM // 32, BN // 32; D = NXI + NWI
    Q = BN // 8
    esz = 4 if omode == 'f32' else 2
    v = 1
    def alloc(n, al=1):
        nonlocal v
        v = (v + al - 1) // al * al
        r = v; v += n; return r
    vDX = alloc(NXI); vDW = alloc(NWI)
    vRX = alloc(2); vRW = alloc(2); vAX = alloc(2); vAW = alloc(2)
    vT = alloc(8, 2)
    vO = alloc(1)
    fX = [alloc(MB * 4, 4), alloc(MB * 4, 4)]
    fW = [alloc(NB * 4, 4), alloc(NB * 4, 4)]
    acc = alloc(MB * NB * 4, 4)
    nvgpr = v
    assert nvgpr <= 256, nvgpr
    L = lambda s: f"{name}_{s}"
    a.label(f"{name}_kernel")
    a(f"s_cmp_ge_u32 s2, {cfg['nwg']}")
    a(f"s_cbranch_scc1 {L('end')}")
    a("s_load_dwordx2 s[40:41], s[0:1], 80")
    cfg['setup'](a, L)
    srd(a, 8, 4, 5, 's42'); srd(a, 12, 6, 7, 's43'); srd(a, 16, 36, 37, 's44')
    if omode == 'res': srd(a, 20, 38, 39, 's44')
    t0, t1, t2, t3, t4, t5 = [vT + i for i in range(6)]
    a(f"v_lshrrev_b32 v{t0}, 6, v0")
    a(f"v_and_b32 v0, 63, v0")
    a(f"v_readfirstlane_b32 s29, v{t0}")
    a("s_nop 3")
    a("s_cmp_lt_u32 s29, 4")
    a(f"s_cbranch_scc1 {L('compute')}")
    a("s_sub_u32 s29, s29, 4")
    a(f"v_subrev_u32 v{t0}, 4, v{t0}")
    a("s_setprio 2")
    a(f"v_lshrrev_b32 v{t1}, 3, v0")
    a(f"v_lshl_add_u32 v{t1}, v{t0}, 3, v{t1}")
    a(f"v_bfe_u32 v{t2}, v{t1}, 1, 3")
    a(f"v_and_b32 v{t3}, 7, v0")
    a(f"v_xor_b32 v{t2}, v{t2}, v{t3}")
    a(f"v_lshlrev_b32 v{t2}, 4, v{t2}")
    a(f"v_mul_lo_u32 v{t3}, v{t1}, s31")
    a(f"v_add_u32 v{vDX}, v{t3}, v{t2}")
    a(f"s_lshl_b32 s45, s31, 5")
    for i in range(1, NXI): a(f"v_add_u32 v{vDX+i}, s45, v{vDX+i-1}")
    if wmode == 'kc':
        a(f"v_mul_lo_u32 v{t3}, v{t1}, s32")
        a(f"v_add_u32 v{vDW}, v{t3}, v{t2}")
        a(f"s_lshl_b32 s45, s32, 5")
        for i in range(1, NWI): a(f"v_add_u32 v{vDW+i}, s45, v{vDW+i-1}")
        a("s_movk_i32 s34, 128")
    else:
        for i in range(NWI):
            a(f"v_lshl_add_u32 v{t1}, v{t0}, 6, v0")
            if i: a(f"v_add_u32 v{t1}, {256*i}, v{t1}")
            if Q == 8:
                a(f"v_lshrrev_b32 v{t2}, 3, v{t1}")
                a(f"v_and_b32 v{t3}, 7, v{t1}")
                a(f"v_and_b32 v{t4}, 2, v{t2}")
                a(f"v_bfe_u32 v{t5}, v{t2}, 3, 1")
                a(f"v_lshl_or_b32 v{t4}, v{t5}, 2, v{t4}")
            else:
                assert Q == 28
                a(f"v_mul_u32_u24 v{t2}, 2341, v{t1}")
                a(f"v_lshrrev_b32 v{t2}, 16, v{t2}")
                a(f"v_mul_u32_u24 v{t3}, 28, v{t2}")
                a(f"v_sub_u32 v{t3}, v{t1}, v{t3}")
                a(f"v_bfe_u32 v{t4}, v{t2}, 3, 1")
                a(f"v_lshlrev_b32 v{t4}, 1, v{t4}")
            a(f"v_xor_b32 v{t3}, v{t3}, v{t4}")
            a(f"v_mul_lo_u32 v{t2}, v{t2}, s32")
            a(f"v_lshl_add_u32 v{vDW+i}, v{t3}, 4, v{t2}")
        a("s_lshl_b32 s34, s32, 6")
    def dma_list():
        o = []
        for g in range(D):
            if g == 0: o.append("s_mov_b32 m0, s27")
            else: o.append("s_add_u32 m0, m0, 0x1000")
            o.append("s_nop 0")
            if g < NXI: o.append(f"buffer_load_dwordx4 v{vDX+g}, s[8:11], s25 offen lds")
            else: o.append(f"buffer_load_dwordx4 v{vDW+g-NXI}, s[12:15], s26 offen lds")
        return o + ["s_add_u32 s25, s25, 128", "s_add_u32 s26, s26, s34",
                f"s_add_u32 s27, s27, {ST}", f"s_cmp_ge_u32 s27, s48",
                f"s_cselect_b32 s49, {NS*ST}, 0", "s_sub_u32 s27, s27, s49"]
    a("s_mov_b32 s25, 0"); a("s_mov_b32 s26, 0")
    a("s_lshl_b32 s27, s29, 10")
    a(f"s_add_u32 s48, s27, {NS*ST}")
    for t in range(NS):
        for x in dma_list(): a(x)
    a(f"s_waitcnt vmcnt({(NS-1)*D})")
    a("s_barrier")
    a(f"s_sub_u32 s24, s24, {NS}")
    a("s_cmp_eq_u32 s24, 0")
    a(f"s_cbranch_scc1 {L('ltail')}")
    a.label(L('lloop'))
    a(f"s_waitcnt vmcnt({(NS-2)*D})")
    a("s_barrier")
    for x in dma_list(): a(x)
    a("s_sub_u32 s24, s24, 1")
    a("s_cmp_lg_u32 s24, 0")
    a(f"s_cbranch_scc1 {L('lloop')}")
    a.label(L('ltail'))
    for j in range(NS - 1):
        a(f"s_waitcnt vmcnt({(NS-2-j)*D})")
        a("s_barrier")
    a("s_endpgm")
    a.label(L('compute'))
    t0, t1, t2, t3, t4, t5 = [vT + i for i in range(6)]
    sh = {1: 0, 2: 1, 4: 2}[WN]
    a(f"s_lshr_b32 s46, s29, {sh}")
    a(f"s_and_b32 s47, s29, {WN-1}")
    a(f"v_and_b32 v{t1}, 15, v0")
    a(f"v_lshrrev_b32 v{t2}, 4, v0")
    a(f"v_lshrrev_b32 v{t3}, 1, v{t1}")
    a(f"v_xor_b32 v{t3}, v{t3}, v{t2}")
    a(f"v_lshlrev_b32 v{t3}, 4, v{t3}")
    a(f"v_lshl_add_u32 v{t3}, v{t1}, 7, v{t3}")
    a(f"s_mul_i32 s45, s46, {WTM*128}")
    a(f"v_add_u32 v{vRX}, s45, v{t3}")
    a(f"v_xor_b32 v{vRX+1}, 64, v{vRX}")
    if wmode == 'kc':
        a(f"s_mul_i32 s45, s47, {WTN*128}")
        a(f"s_add_u32 s45, s45, {XB}")
        a(f"v_add_u32 v{vRW}, s45, v{t3}")
        a(f"v_xor_b32 v{vRW+1}, 64, v{vRW}")
    else:
        a(f"v_lshrrev_b32 v{t3}, 2, v{t1}")
        a(f"v_lshl_add_u32 v{t4}, v{t2}, 3, v{t3}")
        if Q == 8:
            a(f"v_and_b32 v{t3}, 2, v{t3}")
            a(f"v_and_b32 v{t5}, 1, v{t2}")
            a(f"v_lshl_or_b32 v{t3}, v{t5}, 2, v{t3}")
        else:
            a(f"v_and_b32 v{t3}, 1, v{t2}")
            a(f"v_lshlrev_b32 v{t3}, 1, v{t3}")
        a(f"v_mul_u32_u24 v{t4}, {Q}, v{t4}")
        a(f"v_bfe_u32 v{t5}, v0, 1, 1")
        for par in range(2):
            a(f"s_mul_i32 s45, s47, {2*NB}")
            a(f"s_add_u32 s45, s45, {2*par}")
            a(f"v_add_u32 v{vRW+par}, s45, v{t5}")
            a(f"v_xor_b32 v{vRW+par}, v{vRW+par}, v{t3}")
            a(f"v_add_u32 v{vRW+par}, v{vRW+par}, v{t4}")
            a(f"v_lshlrev_b32 v{vRW+par}, 4, v{vRW+par}")
            a(f"v_and_b32 v{vT+6}, 1, v0")
            a(f"v_lshl_add_u32 v{vRW+par}, v{vT+6}, 3, v{vRW+par}")
            a(f"v_add_u32 v{vRW+par}, {XB}, v{vRW+par}")
    a(f"s_mul_i32 s45, s46, {WTM}")
    a(f"v_add_u32 v{t1}, s45, v{t1}")
    a(f"v_mul_lo_u32 v{vO}, v{t1}, s33")
    a(f"s_mul_i32 s45, s47, {WTN*esz}")
    a(f"v_lshlrev_b32 v{t2}, {2 + (2 if esz == 4 else 1)}, v{t2}")
    a(f"v_add3_u32 v{vO}, v{vO}, v{t2}, s45")
    for i in range(MB * NB * 4): a(f"v_mov_b32 v{acc+i}, 0")
    def reads(ks, st):
        o = []
        for mb in range(MB): o.append(f"ds_read_b128 v[{fX[st]+4*mb}:{fX[st]+4*mb+3}], v{vAX+ks} offset:{mb*2048}")
        for nb in range(NB):
            r = fW[st] + 4 * nb
            if wmode == 'kc':
                o.append(f"ds_read_b128 v[{r}:{r+3}], v{vAW+ks} offset:{nb*2048}")
            else:
                for h in range(2):
                    o.append(f"ds_read_b64_tr_b16 v[{r+2*h}:{r+2*h+1}], v{vAW+(nb&1)} offset:{(32*ks+4*h)*Q*16+(nb>>1)*64}")
        return o
    def mfmas(st):
        o = []
        for nb in range(NB):
            for mb in range(MB):
                c = acc + (mb * NB + nb) * 4
                o.append(f"v_mfma_f32_16x16x32_bf16 v[{c}:{c+3}], v[{fW[st]+4*nb}:{fW[st]+4*nb+3}], v[{fX[st]+4*mb}:{fX[st]+4*mb+3}], v[{c}:{c+3}]")
        return o
    def addr_upd():
        return [f"v_add_u32 v{vAX}, s28, v{vRX}", f"v_add_u32 v{vAX+1}, s28, v{vRX+1}",
                f"v_add_u32 v{vAW}, s28, v{vRW}", f"v_add_u32 v{vAW+1}, s28, v{vRW+1}"]
    def rd_adv():
        return [f"s_add_u32 s28, s28, {ST}", f"s_cmp_ge_u32 s28, {NS*ST}",
                f"s_cselect_b32 s49, {NS*ST}, 0", "s_sub_u32 s28, s28, s49"]
    a("s_mov_b32 s28, 0")
    a("s_barrier")
    for x in addr_upd(): a(x)
    for x in rd_adv(): a(x)
    for x in reads(0, 0): a(x)
    nm = MB * NB
    def body(do_dma, vm, last):
        a("s_waitcnt lgkmcnt(0)")
        rd = reads(1, 1)
        pg = max(1, -(-len(rd) // max(1, (nm * 2) // 3)))
        for x in interleave(mfmas(0), rd, pg): a(x)
        if last:
            a("s_waitcnt lgkmcnt(0)")
            for x in mfmas(1): a(x)
            return
        a("s_waitcnt lgkmcnt(0)")
        a("s_barrier")
        for x in addr_upd(): a(x)
        oth = reads(0, 0) + rd_adv()
        pg = max(1, -(-len(rd) // max(1, (nm * 2) // 3)))
        for x in interleave(mfmas(1), oth, pg): a(x)
    a("s_sub_u32 s24, s24, 1")
    a.label(L('loop'))
    body(False, 0, False)
    a("s_sub_u32 s24, s24, 1")
    a("s_cmp_lg_u32 s24, 0")
    a(f"s_cbranch_scc1 {L('loop')}")
    body(False, 0, True)
    a("s_nop 7"); a("s_nop 1")
    a("s_lshl_b32 s45, s33, 4")
    a("s_mov_b32 s46, 0")
    fr = fX[0]
    if omode == 'res':
        rr = fX[0]
        assert MB * NB * 2 <= acc - fX[0]
        for mb in range(MB):
            for nb in range(NB):
                r = rr + (mb * NB + nb) * 2
                a(f"buffer_load_dwordx2 v[{r}:{r+1}], v{vO}, s[20:23], s46 offen offset:{nb*32}")
            a("s_add_u32 s46, s46, s45")
        a("s_mov_b32 s46, 0")
        a("s_waitcnt vmcnt(0)")
    for mb in range(MB):
        for nb in range(NB):
            c = acc + (mb * NB + nb) * 4
            if omode == 'f32':
                a(f"buffer_store_dwordx4 v[{c}:{c+3}], v{vO}, s[16:19], s46 offen offset:{nb*64}")
                continue
            if omode == 'relu':
                for i in range(4): a(f"v_max_f32 v{c+i}, 0, v{c+i}")
            if omode == 'res':
                r = rr + (mb * NB + nb) * 2
                a(f"v_lshlrev_b32 v{vT}, 16, v{r}"); a(f"v_and_b32 v{vT+1}, 0xffff0000, v{r}")
                a(f"v_lshlrev_b32 v{vT+2}, 16, v{r+1}"); a(f"v_and_b32 v{vT+3}, 0xffff0000, v{r+1}")
                for i in range(4): a(f"v_add_f32 v{c+i}, v{c+i}, v{vT+i}")
            a(f"v_cvt_pk_bf16_f32 v{c}, v{c}, v{c+1}")
            a(f"v_cvt_pk_bf16_f32 v{c+1}, v{c+2}, v{c+3}")
            a(f"buffer_store_dwordx2 v[{c}:{c+1}], v{vO}, s[16:19], s46 offen offset:{nb*32}")
        a("s_add_u32 s46, s46, s45")
    a.label(L('end'))
    a("s_endpgm")
    return nvgpr, NS * ST
```

```python
class Asm:
    def __init__(self): self.lines = []
    def __call__(self, s): self.lines.append("    " + s)
    def label(self, l): self.lines.append(l + ":")
    def text(self): return "\n".join(self.lines) + "\n"

NOK = 0
TS = 0
TSWG = 0
KARG = dict(x=0, ws_re=8, ws_im=16, wd_re=24, wd_im=32, bx=40, w1=48, w2=56, out=64, dbg=72, ws=80)

def srd(a, d, lo, hi, nrec):
    a(f"s_mov_b32 s{d}, s{lo}"); a(f"s_mov_b32 s{d+1}, s{hi}")
    a(f"s_mov_b32 s{d+2}, {nrec}"); a(f"s_mov_b32 s{d+3}, 0x00020000")

def emit_stream(a, name, base_wg, segs, waves, endl):
    a(f"s_sub_u32 s2, s2, {base_wg}")
    a("v_lshrrev_b32 v1, 6, v0"); a("v_and_b32 v0, 63, v0"); a("v_readfirstlane_b32 s3, v1")
    a("v_lshlrev_b32 v0, 4, v0")
    tot = 0
    for i, (karg, nrows, pitch, ipr, RPW, size) in enumerate(segs):
        nw = -(-nrows // (RPW * waves))
        a(f"s_cmp_ge_u32 s2, {nw}")
        a(f"s_cbranch_scc1 {name}_st{i+1}")
        a(f"s_load_dwordx2 s[4:5], s[0:1], {karg}")
        a(f"s_mul_i32 s6, s2, {waves}"); a("s_add_u32 s6, s6, s3"); a(f"s_mul_i32 s6, s6, {RPW*pitch}")
        a("s_waitcnt lgkmcnt(0)")
        a("s_add_u32 s8, s4, s6"); a("s_addc_u32 s9, s5, 0")
        a(f"s_sub_u32 s10, {size}, s6"); a("s_cselect_b32 s10, 0, s10"); a("s_mov_b32 s11, 0x00020000")
        a("s_mov_b32 s7, 0")
        for r in range(RPW):
            for p in range(ipr):
                a(f"buffer_load_dwordx4 v[4:7], v0, s[8:11], s7 offen offset:{p*1024}")
            if r != RPW - 1: a(f"s_add_u32 s7, s7, {pitch}")
        a("s_waitcnt vmcnt(0)")
        a("s_endpgm")
        a.label(f"{name}_st{i+1}")
        a(f"s_sub_u32 s2, s2, {nw}")
        tot += nw
    a(f"s_branch {endl}")
    return tot

def interleave(mf, others, per_gap, start=0):
    out = []; oi = 0
    for i, m in enumerate(mf):
        out.append(m)
        if i >= start:
            n = per_gap(i) if callable(per_gap) else per_gap
            for _ in range(n):
                if oi < len(others): out.append(others[oi]); oi += 1
    out += others[oi:]
    return out

def emit_gemm(a, cfg):
    name = cfg['name']; BM, BN, WM, WN, NS = cfg['BM'], cfg['BN'], cfg['WM'], cfg['WN'], cfg['NS']
    wmode, omode = cfg['wmode'], cfg['out']
    WTM, WTN = BM // WM, BN // WN
    MB, NB = WTM // 16, WTN // 16
    XB = BM * 128; WB = BN * 128; ST = XB + WB
    NXI, NWI = BM // 32, BN // 32; D = NXI + NWI
    Q = BN // 8
    esz = 4 if omode == 'f32' else 2
    v = 1
    def alloc(n, al=1):
        nonlocal v
        v = (v + al - 1) // al * al
        r = v; v += n; return r
    vDX = alloc(NXI); vDW = alloc(NWI)
    vRX = alloc(2); vRW = alloc(2); vAX = alloc(2); vAW = alloc(2)
    vT = alloc(8, 2)
    vO = alloc(1); vPF = alloc(1)
    fX = [alloc(MB * 4, 4), alloc(MB * 4, 4)]
    fW = [alloc(NB * 4, 4), alloc(NB * 4, 4)]
    acc = alloc(MB * NB * 4, 4)
    nvgpr = v
    assert nvgpr <= 256, nvgpr
    L = lambda s: f"{name}_{s}"
    a.label(f"{name}_kernel")
    a(f"s_cmp_ge_u32 s2, {cfg['nwg']}")
    a(f"s_cbranch_scc1 {L('stream') if cfg.get('stream') else L('end')}")
    a("s_load_dwordx2 s[40:41], s[0:1], 80")
    if TS:
        a("s_mov_b32 s70, s2"); a("s_memtime s[56:57]"); a("s_memrealtime s[64:65]"); a("s_load_dwordx2 s[68:69], s[0:1], 72")
    cfg['setup'](a, L)
    srd(a, 8, 4, 5, 's42'); srd(a, 12, 6, 7, 's43'); srd(a, 16, 36, 37, 's44')
    if omode == 'res': srd(a, 20, 38, 39, 's44')
    t0, t1, t2, t3, t4, t5 = [vT + i for i in range(6)]
    a(f"v_lshrrev_b32 v{t0}, 6, v0")
    a(f"v_and_b32 v0, 63, v0")
    a(f"v_readfirstlane_b32 s29, v{t0}")
    a("s_nop 3")
    a("s_cmp_lt_u32 s29, 4")
    a(f"s_cbranch_scc1 {L('compute')}")
    a("s_sub_u32 s29, s29, 4")
    a(f"v_subrev_u32 v{t0}, 4, v{t0}")
    a("s_setprio 2")
    a(f"v_lshrrev_b32 v{t1}, 3, v0")
    a(f"v_lshl_add_u32 v{t1}, v{t0}, 3, v{t1}")
    a(f"v_bfe_u32 v{t2}, v{t1}, 1, 3")
    a(f"v_and_b32 v{t3}, 7, v0")
    a(f"v_xor_b32 v{t2}, v{t2}, v{t3}")
    a(f"v_lshlrev_b32 v{t2}, 4, v{t2}")
    a(f"v_mul_lo_u32 v{t3}, v{t1}, s31")
    a(f"v_add_u32 v{vDX}, v{t3}, v{t2}")
    a(f"s_lshl_b32 s45, s31, 5")
    for i in range(1, NXI): a(f"v_add_u32 v{vDX+i}, s45, v{vDX+i-1}")
    if wmode == 'kc':
        a(f"v_mul_lo_u32 v{t3}, v{t1}, s32")
        a(f"v_add_u32 v{vDW}, v{t3}, v{t2}")
        a(f"s_lshl_b32 s45, s32, 5")
        for i in range(1, NWI): a(f"v_add_u32 v{vDW+i}, s45, v{vDW+i-1}")
        a("s_movk_i32 s34, 128")
    else:
        for i in range(NWI):
            a(f"v_lshl_add_u32 v{t1}, v{t0}, 6, v0")
            if i: a(f"v_add_u32 v{t1}, {256*i}, v{t1}")
            if Q == 8:
                a(f"v_lshrrev_b32 v{t2}, 3, v{t1}")
                a(f"v_and_b32 v{t3}, 7, v{t1}")
                a(f"v_and_b32 v{t4}, 2, v{t2}")
                a(f"v_bfe_u32 v{t5}, v{t2}, 3, 1")
                a(f"v_lshl_or_b32 v{t4}, v{t5}, 2, v{t4}")
            else:
                assert Q == 28
                a(f"v_mul_u32_u24 v{t2}, 2341, v{t1}")
                a(f"v_lshrrev_b32 v{t2}, 16, v{t2}")
                a(f"v_mul_u32_u24 v{t3}, 28, v{t2}")
                a(f"v_sub_u32 v{t3}, v{t1}, v{t3}")
                a(f"v_bfe_u32 v{t4}, v{t2}, 3, 1")
                a(f"v_lshlrev_b32 v{t4}, 1, v{t4}")
            a(f"v_xor_b32 v{t3}, v{t3}, v{t4}")
            a(f"v_mul_lo_u32 v{t2}, v{t2}, s32")
            a(f"v_lshl_add_u32 v{vDW+i}, v{t3}, 4, v{t2}")
        a("s_lshl_b32 s34, s32, 6")
    def dma_list():
        o = []
        for g in range(D):
            if g == 0: o.append("s_mov_b32 m0, s27")
            else: o.append("s_add_u32 m0, m0, 0x1000")
            o.append("s_nop 0")
            if g < NXI: o.append(f"buffer_load_dwordx4 v{vDX+g}, s[8:11], s25 offen lds")
            else: o.append(f"buffer_load_dwordx4 v{vDW+g-NXI}, s[12:15], s26 offen lds")
        return o + ([] if NOK & 1 else ["s_add_u32 s25, s25, 128"]) + ([] if NOK & 2 else ["s_add_u32 s26, s26, s34"]) + [
                f"s_add_u32 s27, s27, {ST}", f"s_cmp_ge_u32 s27, s48",
                f"s_cselect_b32 s49, {NS*ST}, 0", "s_sub_u32 s27, s27, s49"]
    a("s_mov_b32 s25, 0"); a("s_mov_b32 s26, 0")
    a("s_lshl_b32 s27, s29, 10")
    a(f"s_add_u32 s48, s27, {NS*ST}")
    for t in range(NS):
        for x in dma_list(): a(x)
    a(f"s_waitcnt vmcnt({(NS-1)*D})")
    a("s_barrier")
    a(f"s_sub_u32 s24, s24, {NS}")
    a("s_cmp_eq_u32 s24, 0")
    a(f"s_cbranch_scc1 {L('ltail')}")
    a.label(L('lloop'))
    a(f"s_waitcnt vmcnt({(NS-2)*D})")
    a("s_barrier")
    for x in dma_list(): a(x)
    a("s_sub_u32 s24, s24, 1")
    a("s_cmp_lg_u32 s24, 0")
    a(f"s_cbranch_scc1 {L('lloop')}")
    a.label(L('ltail'))
    for j in range(NS - 1):
        a(f"s_waitcnt vmcnt({(NS-2-j)*D})")
        a("s_barrier")
    a("s_endpgm")
    a.label(L('compute'))
    if wmode == 'kc': a("s_movk_i32 s84, 128")
    else: a("s_lshl_b32 s84, s32, 6")
    t0, t1, t2, t3, t4, t5 = [vT + i for i in range(6)]
    sh = {1: 0, 2: 1, 4: 2}[WN]
    a(f"s_lshr_b32 s46, s29, {sh}")
    a(f"s_and_b32 s47, s29, {WN-1}")
    a(f"v_and_b32 v{t1}, 15, v0")
    a(f"v_lshrrev_b32 v{t2}, 4, v0")
    a(f"v_lshrrev_b32 v{t3}, 1, v{t1}")
    a(f"v_xor_b32 v{t3}, v{t3}, v{t2}")
    a(f"v_lshlrev_b32 v{t3}, 4, v{t3}")
    a(f"v_lshl_add_u32 v{t3}, v{t1}, 7, v{t3}")
    a(f"s_mul_i32 s45, s46, {WTM*128}")
    a(f"v_add_u32 v{vRX}, s45, v{t3}")
    a(f"v_xor_b32 v{vRX+1}, 64, v{vRX}")
    if wmode == 'kc':
        a(f"s_mul_i32 s45, s47, {WTN*128}")
        a(f"s_add_u32 s45, s45, {XB}")
        a(f"v_add_u32 v{vRW}, s45, v{t3}")
        a(f"v_xor_b32 v{vRW+1}, 64, v{vRW}")
    else:
        a(f"v_lshrrev_b32 v{t3}, 2, v{t1}")
        a(f"v_lshl_add_u32 v{t4}, v{t2}, 3, v{t3}")
        if Q == 8:
            a(f"v_and_b32 v{t3}, 2, v{t3}")
            a(f"v_and_b32 v{t5}, 1, v{t2}")
            a(f"v_lshl_or_b32 v{t3}, v{t5}, 2, v{t3}")
        else:
            a(f"v_and_b32 v{t3}, 1, v{t2}")
            a(f"v_lshlrev_b32 v{t3}, 1, v{t3}")
        a(f"v_mul_u32_u24 v{t4}, {Q}, v{t4}")
        a(f"v_bfe_u32 v{t5}, v0, 1, 1")
        for par in range(2):
            a(f"s_mul_i32 s45, s47, {2*NB}")
            a(f"s_add_u32 s45, s45, {2*par}")
            a(f"v_add_u32 v{vRW+par}, s45, v{t5}")
            a(f"v_xor_b32 v{vRW+par}, v{vRW+par}, v{t3}")
            a(f"v_add_u32 v{vRW+par}, v{vRW+par}, v{t4}")
            a(f"v_lshlrev_b32 v{vRW+par}, 4, v{vRW+par}")
            a(f"v_and_b32 v{vT+6}, 1, v0")
            a(f"v_lshl_add_u32 v{vRW+par}, v{vT+6}, 3, v{vRW+par}")
            a(f"v_add_u32 v{vRW+par}, {XB}, v{vRW+par}")
    a(f"s_mul_i32 s45, s46, {WTM}")
    a(f"v_add_u32 v{t1}, s45, v{t1}")
    a(f"v_mul_lo_u32 v{vO}, v{t1}, s33")
    a(f"s_mul_i32 s45, s47, {WTN*esz}")
    a(f"v_lshlrev_b32 v{t2}, {2 + (2 if esz == 4 else 1)}, v{t2}")
    a(f"v_add3_u32 v{vO}, v{vO}, v{t2}, s45")
    pf = cfg.get('pf')
    if pf:
        PD = pf['PD']
        a("s_cmp_eq_u32 s29, 0")
        for j in range(4): a(f"s_cselect_b32 s{76+j}, s{8+j}, s{12+j}")
        a("s_cselect_b32 s80, 128, s84")
        pf['lanes'](a, vPF, t1, t2, t3)
        a("s_mul_i32 s82, s80, s24"); a("s_sub_u32 s82, s82, s80")
        a(f"s_mul_i32 s81, s80, {NS}")
        for j in range(NS, PD):
            a("s_min_u32 s83, s81, s82")
            a(f"buffer_load_dword v{vT+7}, v{vPF}, s[76:79], s83 offen")
            a("s_add_u32 s81, s81, s80")
    def pf_list():
        if not pf: return []
        return ["s_min_u32 s83, s81, s82", f"buffer_load_dword v{vT+7}, v{vPF}, s[76:79], s83 offen", "s_add_u32 s81, s81, s80"]
    for i in range(MB * NB * 4): a(f"v_mov_b32 v{acc+i}, 0")
    def reads(ks, st):
        o = []
        for mb in range(MB): o.append(f"ds_read_b128 v[{fX[st]+4*mb}:{fX[st]+4*mb+3}], v{vAX+ks} offset:{mb*2048}")
        for nb in range(NB):
            r = fW[st] + 4 * nb
            if wmode == 'kc':
                o.append(f"ds_read_b128 v[{r}:{r+3}], v{vAW+ks} offset:{nb*2048}")
            else:
                for h in range(2):
                    o.append(f"ds_read_b64_tr_b16 v[{r+2*h}:{r+2*h+1}], v{vAW+(nb&1)} offset:{(32*ks+4*h)*Q*16+(nb>>1)*64}")
        return o
    def mfmas(st):
        o = []
        for nb in range(NB):
            for mb in range(MB):
                c = acc + (mb * NB + nb) * 4
                o.append(f"v_mfma_f32_16x16x32_bf16 v[{c}:{c+3}], v[{fW[st]+4*nb}:{fW[st]+4*nb+3}], v[{fX[st]+4*mb}:{fX[st]+4*mb+3}], v[{c}:{c+3}]")
        return o
    def addr_upd():
        return [f"v_add_u32 v{vAX}, s28, v{vRX}", f"v_add_u32 v{vAX+1}, s28, v{vRX+1}",
                f"v_add_u32 v{vAW}, s28, v{vRW}", f"v_add_u32 v{vAW+1}, s28, v{vRW+1}"]
    def rd_adv():
        return [f"s_add_u32 s28, s28, {ST}", f"s_cmp_ge_u32 s28, {NS*ST}",
                f"s_cselect_b32 s49, {NS*ST}, 0", "s_sub_u32 s28, s28, s49"]
    a("s_mov_b32 s28, 0")
    a("s_barrier")
    if TS: a("s_memtime s[58:59]")
    for x in addr_upd(): a(x)
    for x in rd_adv(): a(x)
    for x in reads(0, 0): a(x)
    nm = MB * NB
    def body(do_dma, vm, last):
        a("s_waitcnt lgkmcnt(0)")
        rd = pf_list() + reads(1, 1) if not last else reads(1, 1)
        pg = max(1, -(-len(rd) // max(1, (nm * 2) // 3)))
        for x in interleave(mfmas(0), rd, pg): a(x)
        if last:
            a("s_waitcnt lgkmcnt(0)")
            for x in mfmas(1): a(x)
            return
        a("s_waitcnt lgkmcnt(0)")
        a("s_barrier")
        for x in addr_upd(): a(x)
        oth = reads(0, 0) + rd_adv()
        pg = max(1, -(-len(rd) // max(1, (nm * 2) // 3)))
        for x in interleave(mfmas(1), oth, pg): a(x)
    a("s_sub_u32 s24, s24, 1")
    a.label(L('loop'))
    body(False, 0, False)
    a("s_sub_u32 s24, s24, 1")
    a("s_cmp_lg_u32 s24, 0")
    a(f"s_cbranch_scc1 {L('loop')}")
    body(False, 0, True)
    if TS: a("s_memtime s[60:61]")
    a("s_nop 7"); a("s_nop 1")
    a("s_lshl_b32 s45, s33, 4")
    a("s_mov_b32 s46, 0")
    fr = fX[0]
    if omode == 'res':
        rr = fX[0]
        assert MB * NB * 2 <= acc - fX[0]
        for mb in range(MB):
            for nb in range(NB):
                r = rr + (mb * NB + nb) * 2
                a(f"buffer_load_dwordx2 v[{r}:{r+1}], v{vO}, s[20:23], s46 offen offset:{nb*32}")
            a("s_add_u32 s46, s46, s45")
        a("s_mov_b32 s46, 0")
        a("s_waitcnt vmcnt(0)")
    for mb in range(MB):
        for nb in range(NB):
            c = acc + (mb * NB + nb) * 4
            if omode == 'f32':
                a(f"buffer_store_dwordx4 v[{c}:{c+3}], v{vO}, s[16:19], s46 offen offset:{nb*64}")
                continue
            if omode == 'relu':
                for i in range(4): a(f"v_max_f32 v{c+i}, 0, v{c+i}")
            if omode == 'res':
                r = rr + (mb * NB + nb) * 2
                a(f"v_lshlrev_b32 v{vT}, 16, v{r}"); a(f"v_and_b32 v{vT+1}, 0xffff0000, v{r}")
                a(f"v_lshlrev_b32 v{vT+2}, 16, v{r+1}"); a(f"v_and_b32 v{vT+3}, 0xffff0000, v{r+1}")
                for i in range(4): a(f"v_add_f32 v{c+i}, v{c+i}, v{vT+i}")
            a(f"v_cvt_pk_bf16_f32 v{c}, v{c}, v{c+1}")
            a(f"v_cvt_pk_bf16_f32 v{c+1}, v{c+2}, v{c+3}")
            a(f"buffer_store_dwordx2 v[{c}:{c+1}], v{vO}, s[16:19], s46 offen offset:{nb*32}")
        a("s_add_u32 s46, s46, s45")
    if TS:
        a("s_waitcnt vmcnt(0)"); a("s_memtime s[62:63]"); a("s_memrealtime s[66:67]"); a("s_waitcnt lgkmcnt(0)")
        a(f"s_cmp_lg_u32 s70, {TSWG}"); a(f"s_cbranch_scc1 {L('end')}"); a("s_cmp_lg_u32 s29, 0"); a(f"s_cbranch_scc1 {L('end')}")
        a("s_sub_u32 s58, s58, s56"); a("s_sub_u32 s60, s60, s56"); a("s_sub_u32 s62, s62, s56"); a("s_sub_u32 s66, s66, s64")
        a("s_mov_b32 s70, 256"); a("s_mov_b32 s71, 0x00020000")
        a("s_mov_b32 s72, s68"); a("s_mov_b32 s73, s69"); a("s_mov_b32 s74, 256"); a("s_mov_b32 s75, 0x00020000")
        a("v_mov_b32 v4, s58"); a("v_mov_b32 v5, s60"); a("v_mov_b32 v6, s62"); a("v_mov_b32 v7, s66")
        a(f"v_mov_b32 v1, {cfg.get('tsoff', 0)}")
        a("buffer_store_dwordx4 v[4:7], v1, s[72:75], 0 offen"); a("s_waitcnt vmcnt(0)")
    a.label(L('end'))
    a("s_endpgm")
    extra = 0
    if cfg.get('stream'):
        a.label(L('stream'))
        extra = emit_stream(a, name, cfg['nwg'], cfg['stream'], 8, L('end'))
    cfg['extra'] = extra
    return nvgpr, NS * ST
```

```python
from gemm import srd
MB_ = 1 << 20
WS = dict(EE=0, OO=2*MB_, GT=4*MB_, HT=6*MB_, P=8*MB_, Q=12*MB_, HN=16*MB_, H=20*MB_, H1=24*MB_)

def wave_sum(a, regs):
    steps = ["row_shr:1 row_mask:0xf bank_mask:0xf bound_ctrl:0", "row_shr:2 row_mask:0xf bank_mask:0xf bound_ctrl:0",
             "row_shr:4 row_mask:0xf bank_mask:0xf bound_ctrl:0", "row_shr:8 row_mask:0xf bank_mask:0xf bound_ctrl:0",
             "row_bcast:15 row_mask:0xa bank_mask:0xf", "row_bcast:31 row_mask:0xc bank_mask:0xf"]
    for s in steps:
        a("s_nop 1")
        for r in regs: a(f"v_add_f32_dpp v{r}, v{r}, v{r} {s}")
    a("s_nop 1")

def unpack(a, dst, src, n):
    for i in range(n):
        a(f"v_and_b32 v{dst+2*i+1}, 0xffff0000, v{src+i}")
        a(f"v_lshlrev_b32 v{dst+2*i}, 16, v{src+i}")

def tree_sum(a, dst, regs):
    a(f"v_add_f32 v{dst}, v{regs[0]}, v{regs[1]}")
    for r in regs[2:]: a(f"v_add_f32 v{dst}, v{dst}, v{r}")

def ln_stats(a, rows, tmp, smean, srstd):
    n = len(rows)
    for j, r in enumerate(rows):
        a(f"v_add_f32 v{tmp+j}, v{r[0]}, v{r[1]}")
        for x in r[2:]: a(f"v_add_f32 v{tmp+j}, v{tmp+j}, v{x}")
    wave_sum(a, [tmp + j for j in range(n)])
    for j in range(n): a(f"v_readlane_b32 s{smean+j}, v{tmp+j}, 63")
    a("s_nop 1")
    for j in range(n):
        a(f"v_mov_b32 v{tmp+j}, s{smean+j}")
        a(f"v_mul_f32 v{tmp+j}, 0x3a800000, v{tmp+j}")
    for j, r in enumerate(rows):
        for x in r: a(f"v_sub_f32 v{x}, v{x}, v{tmp+j}")
    for j, r in enumerate(rows):
        a(f"v_mul_f32 v{tmp+j}, v{r[0]}, v{r[0]}")
        for x in r[1:]: a(f"v_fmac_f32 v{tmp+j}, v{x}, v{x}")
    wave_sum(a, [tmp + j for j in range(n)])
    for j in range(n): a(f"v_readlane_b32 s{srstd+j}, v{tmp+j}, 63")
    a("s_nop 1")
    for j in range(n):
        a(f"v_mov_b32 v{tmp+j}, s{srstd+j}")
        a(f"v_mul_f32 v{tmp+j}, 0x3a800000, v{tmp+j}")
        a(f"v_add_f32 v{tmp+j}, 0x3727c5ac, v{tmp+j}")
        a(f"v_rsq_f32 v{tmp+j}, v{tmp+j}")
    a("s_nop 0")
    for j, r in enumerate(rows):
        for x in r: a(f"v_mul_f32 v{x}, v{x}, v{tmp+j}")

def emit_prep(a, stream=None):
    a.label("prep_kernel")
    a("s_cmp_ge_u32 s2, 272"); a("s_cbranch_scc1 " + ("prep_stream" if stream else "prep_end"))
    a("s_load_dwordx2 s[4:5], s[0:1], 0"); a("s_load_dwordx2 s[6:7], s[0:1], 80")
    a("v_lshrrev_b32 v1, 6, v0"); a("v_and_b32 v0, 63, v0")
    a("v_readfirstlane_b32 s3, v1")
    a("s_lshl_b32 s20, s2, 2"); a("s_add_u32 s20, s20, s3")
    a("s_waitcnt lgkmcnt(0)")
    srd(a, 8, 4, 5, 4 * MB_)
    a("s_mul_i32 s21, s20, 1152")
    a("s_add_u32 s12, s6, s21"); a("s_addc_u32 s13, s7, 0")
    a("s_mov_b32 s14, 1152"); a("s_mov_b32 s15, 0x00020000")
    a("s_lshl_b32 s21, s20, 10"); a(f"s_add_u32 s21, s21, {WS['OO']}")
    a("s_add_u32 s16, s6, s21"); a("s_addc_u32 s17, s7, 0")
    a("s_mov_b32 s18, 1024"); a("s_mov_b32 s19, 0x00020000")
    a("v_lshlrev_b32 v1, 4, v0")
    a("s_cmp_ge_u32 s20, 1025"); a("s_cbranch_scc1 prep_zero")
    a("s_sub_u32 s22, 2048, s20"); a("s_and_b32 s22, s22, 2047")
    a("s_lshl_b32 s23, s20, 11"); a("s_lshl_b32 s24, s22, 11")
    a("v_sub_u32 v2, 2032, v1")
    a("v_sub_u32 v3, 2048, v1")
    a("buffer_load_dwordx4 v[4:7], v1, s[8:11], s23 offen")
    a("buffer_load_dwordx4 v[8:11], v2, s[8:11], s23 offen")
    a("buffer_load_dwordx4 v[12:15], v1, s[8:11], s24 offen")
    a("buffer_load_dwordx4 v[16:19], v2, s[8:11], s24 offen")
    a("v_add_u32 v22, s23, v3"); a("v_add_u32 v23, s24, v3")
    a("buffer_load_ushort v20, v22, s[8:11], 0 offen")
    a("buffer_load_ushort v21, v23, s[8:11], 0 offen")
    a("s_waitcnt vmcnt(0)")
    A1, B1, A2, B2 = 24, 32, 40, 48
    unpack(a, A1, 4, 4); unpack(a, B1, 8, 4); unpack(a, A2, 12, 4); unpack(a, B2, 16, 4)
    a("v_lshlrev_b32 v20, 16, v20"); a("v_lshlrev_b32 v21, 16, v21")
    r1 = list(range(A1, A1 + 16)); r2 = list(range(A2, A2 + 16))
    ln_stats(a, [r1, r2], 56, 26, 28)
    for j, c in enumerate([20, 21]):
        a(f"v_mov_b32 v58, s{26+j}")
        a(f"v_mul_f32 v58, 0x3a800000, v58")
        a(f"v_sub_f32 v{c}, v{c}, v58")
        a(f"v_mul_f32 v{c}, v{c}, v{56+j}")
    a("v_cmp_eq_u32 vcc, 0, v0"); a("s_nop 1")
    a("v_cndmask_b32 v20, v20, 0, vcc") if False else None
    a("v_mov_b32 v58, 0")
    a("v_cndmask_b32 v20, v20, v58, vcc"); a("v_cndmask_b32 v21, v21, v58, vcc")
    a("s_cmp_eq_u32 s20, s22"); a("s_cselect_b32 s25, 0, 1.0")
    for i in range(8):
        m1 = 20 if i == 0 else B1 + 8 - i
        m2 = 21 if i == 0 else B2 + 8 - i
        a(f"v_add_f32 v76, v{A1+i}, v{m1}"); a(f"v_sub_f32 v77, v{A1+i}, v{m1}")
        a(f"v_add_f32 v78, v{A2+i}, v{m2}"); a(f"v_sub_f32 v79, v{A2+i}, v{m2}")
        a(f"v_fma_f32 v{60+i}, s25, v78, v76"); a(f"v_sub_f32 v{68+i}, v77, v79")
    for i in range(4):
        a(f"v_cvt_pk_bf16_f32 v{80+i}, v{60+2*i}, v{61+2*i}")
        a(f"v_cvt_pk_bf16_f32 v{84+i}, v{68+2*i}, v{69+2*i}")
    a("buffer_store_dwordx4 v[80:83], v1, s[12:15], 0 offen")
    a("s_cmp_ge_u32 s20, 1024"); a("s_cbranch_scc1 prep_noO")
    a("buffer_store_dwordx4 v[84:87], v1, s[16:19], 0 offen")
    a.label("prep_noO")
    a(f"v_fma_f32 v76, s25, v{B2}, v{B1}"); a("s_nop 1")
    a("v_readlane_b32 s28, v76, 63"); a("s_nop 1")
    a("v_mov_b32 v76, s28"); a("v_cvt_pk_bf16_f32 v76, v76, v58")
    a("v_cndmask_b32 v88, v58, v76, vcc")
    a("v_mov_b32 v89, 0"); a("v_mov_b32 v90, 0"); a("v_mov_b32 v91, 0")
    a("buffer_store_dwordx4 v[88:91], v1, s[12:15], 0 offen offset:1024")
    a("s_endpgm")
    a.label("prep_zero")
    for i in range(4): a(f"v_mov_b32 v{4+i}, 0")
    a("buffer_store_dwordx4 v[4:7], v1, s[12:15], 0 offen")
    a("buffer_store_dwordx4 v[4:7], v1, s[12:15], 0 offen offset:1024")
    a.label("prep_end")
    a("s_endpgm")
    extra = 0
    if stream:
        from gemm import emit_stream
        a.label("prep_stream")
        extra = emit_stream(a, "prep", 272, stream, 4, "prep_end")
    return 96, extra

def emit_ln2(a):
    a.label("ln2_kernel")
    a("s_cmp_ge_u32 s2, 512"); a("s_cbranch_scc1 ln2_end")
    a("s_load_dwordx2 s[4:5], s[0:1], 0"); a("s_load_dwordx2 s[6:7], s[0:1], 80")
    a("v_lshrrev_b32 v1, 6, v0"); a("v_and_b32 v0, 63, v0")
    a("v_readfirstlane_b32 s3, v1")
    a("s_lshl_b32 s20, s2, 2"); a("s_add_u32 s20, s20, s3")
    a("s_sub_u32 s21, 2048, s20"); a("s_cmp_le_u32 s20, 1024")
    a("s_cselect_b32 s22, s20, s21")
    a("s_cselect_b32 s23, 1.0, -1.0")
    a("s_waitcnt lgkmcnt(0)")
    a("s_lshl_b32 s24, s20, 11")
    a("s_add_u32 s8, s4, s24"); a("s_addc_u32 s9, s5, 0"); a("s_mov_b32 s10, 2048"); a("s_mov_b32 s11, 0x00020000")
    a("s_mul_i32 s25, s22, 2304"); a(f"s_add_u32 s25, s25, {WS['P']}")
    a("s_add_u32 s12, s6, s25"); a("s_addc_u32 s13, s7, 0"); a("s_mov_b32 s14, 2304"); a("s_mov_b32 s15, 0x00020000")
    a("s_lshl_b32 s25, s22, 11"); a(f"s_add_u32 s25, s25, {WS['Q']}")
    a("s_add_u32 s16, s6, s25"); a("s_addc_u32 s17, s7, 0"); a("s_mov_b32 s18, 2048"); a("s_mov_b32 s19, 0x00020000")
    a(f"s_add_u32 s25, s24, {WS['H']}")
    a("s_add_u32 s28, s6, s25"); a("s_addc_u32 s29, s7, 0"); a("s_mov_b32 s30, 2048"); a("s_mov_b32 s31, 0x00020000")
    a(f"s_add_u32 s25, s24, {WS['HN']}")
    a("s_add_u32 s32, s6, s25"); a("s_addc_u32 s33, s7, 0"); a("s_mov_b32 s34, 2048"); a("s_mov_b32 s35, 0x00020000")
    a("v_lshlrev_b32 v1, 4, v0")
    a("v_lshlrev_b32 v2, 5, v0")
    a("v_sub_u32 v3, 2020, v2")
    a("buffer_load_dwordx4 v[4:7], v1, s[8:11], 0 offen")
    a("buffer_load_dwordx4 v[8:11], v1, s[8:11], 0 offen offset:1024")
    PA, QA, PB, QB = 12, 20, 28, 36
    a(f"buffer_load_dwordx4 v[{PA}:{PA+3}], v2, s[12:15], 0 offen")
    a(f"buffer_load_dwordx4 v[{PA+4}:{PA+7}], v2, s[12:15], 0 offen offset:16")
    a(f"buffer_load_dwordx4 v[{QA}:{QA+3}], v2, s[16:19], 0 offen")
    a(f"buffer_load_dwordx4 v[{QA+4}:{QA+7}], v2, s[16:19], 0 offen offset:16")
    a(f"buffer_load_dwordx4 v[{PB}:{PB+3}], v3, s[12:15], 0 offen")
    a(f"buffer_load_dwordx4 v[{PB+4}:{PB+7}], v3, s[12:15], 0 offen offset:16")
    a(f"buffer_load_dwordx4 v[{QB}:{QB+3}], v3, s[16:19], 0 offen")
    a(f"buffer_load_dwordx3 v[{QB+4}:{QB+6}], v3, s[16:19], 0 offen offset:16")
    a(f"buffer_load_dword v{QB+7}, v3, s[16:19], 0 offen offset:28")
    a("s_waitcnt vmcnt(0)")
    XA, XB = 44, 52
    unpack(a, XA, 4, 4); unpack(a, XB, 8, 4)
    HH = 60
    for i in range(8):
        a(f"v_fma_f32 v{PA+i}, -v{QA+i}, s23, v{PA+i}")
        a(f"v_fma_f32 v{PB+i}, v{QB+i}, s23, v{PB+i}")
    for i in range(8):
        a(f"v_add_f32 v{HH+i}, v{XA+i}, v{PA+i}")
        a(f"v_add_f32 v{HH+8+i}, v{XB+i}, v{PB+7-i}")
    for i in range(8): a(f"v_cvt_pk_bf16_f32 v{76+i}, v{HH+2*i}, v{HH+2*i+1}")
    a("buffer_store_dwordx4 v[76:79], v1, s[28:31], 0 offen")
    a("buffer_store_dwordx4 v[80:83], v1, s[28:31], 0 offen offset:1024")
    unpack(a, HH, 76, 8)
    ln_stats(a, [list(range(HH, HH + 16))], 84, 26, 27)
    for i in range(8): a(f"v_cvt_pk_bf16_f32 v{88+i}, v{HH+2*i}, v{HH+2*i+1}")
    a("buffer_store_dwordx4 v[88:91], v1, s[32:35], 0 offen")
    a("buffer_store_dwordx4 v[92:95], v1, s[32:35], 0 offen offset:1024")
    a.label("ln2_end")
    a("s_endpgm")
    return 96
```

```python
import sys, os
from gemm import Asm, emit_gemm, KARG
from rowk import emit_prep, emit_ln2, WS, MB_
NAME = "sequential_preLN__spectral_fnet__dense_activation_relu__prompt"

def add64(a, d, b, off):
    a(f"s_add_u32 s{d}, s{b}, {off}"); a(f"s_addc_u32 s{d+1}, s{b+1}, 0")

def divmod_c(a, q, r, x, d):
    m = -(-65536 // d)
    a(f"s_mul_i32 s{q}, s{x}, {m}"); a(f"s_lshr_b32 s{q}, s{q}, 16")
    a(f"s_mul_i32 s{r}, s{q}, {d}"); a(f"s_sub_u32 s{r}, s{x}, s{r}")

def small_setup(probs, BM, BN, esz):
    def f(a, L):
        p0, p1 = probs
        a("s_lshr_b32 s51, s2, 3"); a("s_and_b32 s50, s2, 3"); a("s_bitcmp1_b32 s2, 2")
        a(f"s_cbranch_scc1 {L('p1')}")
        for i, p in enumerate(probs):
            if i == 1:
                a.label(L('p1'))
            C = -(-p['n'] // 4)
            a(f"s_cmp_ge_u32 s51, {C}"); a(f"s_cbranch_scc1 {L('end')}")
            a(f"s_mul_i32 s2, s50, {C}"); a("s_add_u32 s2, s2, s51")
            a(f"s_cmp_ge_u32 s2, {p['n']}"); a(f"s_cbranch_scc1 {L('end')}")
            if p['X'][0] is not None: a(f"s_load_dwordx2 s[4:5], s[0:1], {KARG[p['X'][0]]}")
            if p['W'][0] is not None: a(f"s_load_dwordx2 s[6:7], s[0:1], {KARG[p['W'][0]]}")
            divmod_c(a, 50, 51, 2, p['nN'])
            a(f"s_mov_b32 s31, {p['ldx']}"); a(f"s_mov_b32 s32, {p['ldw']}"); a(f"s_mov_b32 s33, {p['ldo']}")
            a(f"s_mov_b32 s24, {p['KT']}")
            a("s_waitcnt lgkmcnt(0)")
            a(f"s_mul_i32 s52, s50, {BM*p['ldx']}")
            a(f"s_sub_u32 s42, {p['xsize']}, s52")
            if p['X'][0] is None:
                a(f"s_add_u32 s52, s52, {p['X'][1]}"); add64(a, 4, 40, "s52")
            else: add64(a, 4, 4, "s52")
            a(f"s_mul_i32 s52, s51, {BN*p['ldw']}")
            a(f"s_sub_u32 s43, {p['wsize']}, s52")
            if p['W'][0] is None:
                a(f"s_add_u32 s52, s52, {p['W'][1]}"); add64(a, 6, 40, "s52")
            else: add64(a, 6, 6, "s52")
            a(f"s_mul_i32 s52, s50, {BM*p['ldo']}")
            a(f"s_mul_i32 s53, s51, {BN*esz}")
            a("s_add_u32 s52, s52, s53")
            a(f"s_sub_u32 s44, {p['osize']}, s52")
            a(f"s_add_u32 s52, s52, {p['O']}"); add64(a, 36, 40, "s52")
            if i == 0: a(f"s_branch {L('go')}")
        a.label(L('go'))
    return f

H1P = 7168
HNP = 2048
def big_setup(which):
    def f(a, L):
        a("s_and_b32 s50, s2, 7"); a("s_lshr_b32 s51, s2, 3")
        if which == 1:
            a("s_and_b32 s52, s50, 1"); a("s_lshl_b32 s52, s52, 3"); a("s_and_b32 s53, s51, 7"); a("s_add_u32 s54, s52, s53")
            a("s_lshr_b32 s52, s50, 1"); a("s_lshl_b32 s52, s52, 2"); a("s_lshr_b32 s53, s51, 3"); a("s_add_u32 s55, s52, s53")
            BM, BN, ldx, ldw, ldo, KT = 128, 224, HNP, 7168, H1P, 16
            a(f"s_load_dwordx2 s[6:7], s[0:1], {KARG['w1']}")
            xoff, xsz, wsz, osz = WS['HN'], 2048 * HNP, 1024 * 7168, 2048 * H1P
        else:
            a("s_and_b32 s52, s50, 3"); a("s_lshl_b32 s52, s52, 2"); a("s_and_b32 s53, s51, 3"); a("s_add_u32 s54, s52, s53")
            a("s_lshr_b32 s52, s50, 2"); a("s_lshl_b32 s52, s52, 3"); a("s_lshr_b32 s53, s51, 2"); a("s_add_u32 s55, s52, s53")
            BM, BN, ldx, ldw, ldo, KT = 128, 64, H1P, 2048, 2048, 56
            a(f"s_load_dwordx2 s[6:7], s[0:1], {KARG['w2']}")
            a(f"s_load_dwordx2 s[36:37], s[0:1], {KARG['out']}")
            xoff, xsz, wsz, osz = WS['H1'], 2048 * H1P, 3584 * 2048, 4 * MB_
        a(f"s_mov_b32 s31, {ldx}"); a(f"s_mov_b32 s32, {ldw}"); a(f"s_mov_b32 s33, {ldo}"); a(f"s_mov_b32 s24, {KT}")
        a("s_waitcnt lgkmcnt(0)")
        a(f"s_mul_i32 s52, s54, {BM*ldx}"); a(f"s_sub_u32 s42, {xsz}, s52")
        a(f"s_add_u32 s52, s52, {xoff}"); add64(a, 4, 40, "s52")
        a(f"s_mul_i32 s52, s55, {BN*2}"); a(f"s_sub_u32 s43, {wsz}, s52"); add64(a, 6, 6, "s52")
        a(f"s_mul_i32 s52, s54, {BM*ldo}"); a(f"s_mul_i32 s53, s55, {BN*2}"); a("s_add_u32 s52, s52, s53")
        a(f"s_sub_u32 s44, {osz}, s52")
        if which == 1:
            a(f"s_add_u32 s52, s52, {WS['H1']}"); add64(a, 36, 40, "s52")
        else:
            add64(a, 36, 36, "s52")
            a(f"s_add_u32 s52, s52, {WS['H']}"); add64(a, 38, 40, "s52")
    return f

def pf_lanes(which):
    def f(a, vPF, t1, t2, t3):
        if which == 1:
            a("s_lshr_b32 s45, s51, 3"); a("s_lshl_b32 s45, s45, 5")
            a(f"v_add_u32 v{t1}, s45, v0"); a(f"v_mul_lo_u32 v{t1}, v{t1}, s31")
            a(f"v_mov_b32 v{t3}, 0xf0000000")
            a(f"v_cmp_gt_u32 vcc, 32, v0"); a(f"v_cndmask_b32 v{t1}, v{t3}, v{t1}, vcc")
            a("s_and_b32 s45, s51, 7"); a("s_lshl_b32 s45, s45, 3")
            a(f"v_lshrrev_b32 v{t2}, 3, v0"); a(f"v_add_u32 v{t2}, s45, v{t2}"); a(f"v_mul_lo_u32 v{t2}, v{t2}, s32")
            a(f"v_and_b32 v{vPF}, 7, v0"); a(f"v_cmp_gt_u32 vcc, 7, v{vPF}")
            a(f"v_lshl_add_u32 v{t2}, v{vPF}, 6, v{t2}"); a(f"v_cndmask_b32 v{t2}, v{t3}, v{t2}, vcc")
        else:
            a("s_lshr_b32 s45, s51, 2"); a("s_lshl_b32 s45, s45, 4")
            a(f"v_add_u32 v{t1}, s45, v0"); a(f"v_mul_lo_u32 v{t1}, v{t1}, s31")
            a("s_and_b32 s45, s51, 3"); a("s_lshl_b32 s45, s45, 4")
            a(f"v_add_u32 v{t2}, s45, v0"); a(f"v_mul_lo_u32 v{t2}, v{t2}, s32")
            a(f"v_mov_b32 v{t3}, 0xf0000000")
            a(f"v_cmp_gt_u32 vcc, 16, v0")
            a(f"v_cndmask_b32 v{t1}, v{t3}, v{t1}, vcc"); a(f"v_cndmask_b32 v{t2}, v{t3}, v{t2}, vcc")
        a("s_cmp_eq_u32 s29, 0"); a("s_cselect_b64 vcc, -1, 0")
        a(f"v_cndmask_b32 v{vPF}, v{t2}, v{t1}, vcc")
        a("s_cmp_lt_u32 s29, 2"); a("s_cselect_b64 vcc, -1, 0")
        a(f"v_cndmask_b32 v{vPF}, v{t3}, v{vPF}, vcc")
    return f

def kernel_wrap(name, body, nv):
    nvr = (nv + 7) // 8 * 8
    hdr = f".globl {name}\n.p2align 8\n.type {name},@function\n"
    desc = f""".amdhsa_kernel {name}
  .amdhsa_next_free_vgpr {nvr}
  .amdhsa_next_free_sgpr 96
  .amdhsa_accum_offset {max(4,(nvr+3)//4*4)}
  .amdhsa_group_segment_fixed_size 0
  .amdhsa_kernarg_size 88
  .amdhsa_user_sgpr_count 2
  .amdhsa_user_sgpr_kernarg_segment_ptr 1
  .amdhsa_system_sgpr_workgroup_id_x 1
.end_amdhsa_kernel
"""
    return hdr + body, desc

def build(opts):
    global H1P
    H1P = opts.get('h1p', 7168)
    import gemm; gemm.NOK = opts.get('nok', 0); gemm.TS = opts.get('ts', 0); gemm.TSWG = opts.get('tswg', 0)
    ks = []
    SM = opts.get('SM', 7)
    R1 = opts.get('R1', 2); R2 = opts.get('R2', 4)
    dft = [(KARG['wd_re'], 576, 2048, 2, 2*R1, 2*MB_), (KARG['wd_im'], 576, 2048, 2, 2*R1, 2*MB_), (KARG['ws_re'], 1056, 4096, 3, R1, 8*MB_), (KARG['ws_im'], 1056, 4096, 2, R1, 8*MB_)]
    wseg = lambda k: [(KARG[k], 7168, 1024, 1, R2, 7168*1024)]
    a = Asm(); nv, ex = emit_prep(a, dft if SM & 1 else None); ks.append(("prep_kernel", a.text(), nv, 272 + ex, 0))
    NSs = opts.get('NSs', 4)
    pa = [dict(n=102, nN=17, X=('wd_re', 0), ldx=2048, xsize=2*MB_, W=(None, WS['EE']), ldw=1152, wsize=1088*1152, O=WS['GT'], ldo=2176, osize=576*2176, KT=9),
          dict(n=96, nN=16, X=('wd_im', 0), ldx=2048, xsize=2*MB_, W=(None, WS['OO']), ldw=1024, wsize=1024*1024, O=WS['HT'], ldo=2048, osize=576*2048, KT=8)]
    cf = dict(stream=(wseg('w1') if SM & 2 else None), name='ga', tsoff=0, BM=96, BN=64, WM=2, WN=2, NS=NSs, wmode='kc', out='bf16', nwg=208, setup=small_setup(pa, 96, 64, 2))
    a = Asm(); nv, lds = emit_gemm(a, cf)
    ks.append(("ga_kernel", a.text(), nv, 208 + cf['extra'], lds))
    pb = [dict(n=99, nN=9, X=('ws_re', 0), ldx=4096, xsize=8*MB_, W=(None, WS['GT']), ldw=2176, wsize=576*2176, O=WS['P'], ldo=2304, osize=1056*2304, KT=17),
          dict(n=88, nN=8, X=('ws_im', 0), ldx=4096, xsize=8*MB_, W=(None, WS['HT']), ldw=2048, wsize=576*2048, O=WS['Q'], ldo=2048, osize=1056*2048, KT=16)]
    cf = dict(stream=(wseg('w2') if SM & 4 else None), name='gb', tsoff=16, BM=96, BN=64, WM=2, WN=2, NS=NSs, wmode='kc', out='f32', nwg=200, setup=small_setup(pb, 96, 64, 4))
    a = Asm(); nv, lds = emit_gemm(a, cf)
    ks.append(("gb_kernel", a.text(), nv, 200 + cf['extra'], lds))
    a = Asm(); nv = emit_ln2(a); ks.append(("ln2_kernel", a.text(), nv, 512, 0))
    a = Asm(); nv, lds = emit_gemm(a, dict(name='g1', tsoff=32, BM=128, BN=224, WM=2, WN=2, NS=3, wmode='nc', out='relu', nwg=256, pf=(dict(PD=opts.get('PD1', 0), lanes=pf_lanes(1)) if opts.get('PD1', 0) else None), setup=big_setup(1)))
    ks.append(("g1_kernel", a.text(), nv, 256, lds))
    a = Asm(); nv, lds = emit_gemm(a, dict(name='g2', tsoff=48, BM=128, BN=64, WM=2, WN=2, NS=opts.get('NS2', 6), wmode='nc', out='res', nwg=256, pf=(dict(PD=opts.get('PD2', 0), lanes=pf_lanes(2)) if opts.get('PD2', 0) else None), setup=big_setup(2)))
    ks.append(("g2_kernel", a.text(), nv, 256, lds))
    sel = opts.get('only')
    ref = open(f"cdna_kernels/{NAME}.s.ref").read().split("\n")
    hdr = [l for l in ref if l.startswith(";") and "@launch" not in l and "Override" not in l and "grid=ceil" not in l]
    hdr = hdr[:12]
    out = "\n".join(hdr) + "\n"
    for (n, _, nv, g, lds) in ks:
        if sel and n not in sel: continue
        out += f"; @launch kernel={n} grid=({g},1,1) block=({512 if n in ('ga_kernel','gb_kernel','g1_kernel','g2_kernel') else 256},1,1) lds={lds}\n"
    out += '.amdgcn_target "amdgcn-amd-amdhsa--gfx950"\n.text\n'
    descs = ""
    for (n, body, nv, g, lds) in ks:
        t, d = kernel_wrap(n, body, nv); out += t; descs += d.replace(".amdhsa_kernel", ".p2align 6\n.amdhsa_kernel", 1)
    out += '.section .rodata,"a"\n' + descs
    return out

if __name__ == "__main__":
    opts = {}
    for x in sys.argv[2:]:
        k, v = x.split("=")
        opts[k] = v.split(",") if k == 'only' else int(v)
    open(sys.argv[1], "w").write(build(opts))
```

```python
class Asm:
    def __init__(self): self.lines = []
    def __call__(self, s): self.lines.append("    " + s)
    def label(self, l): self.lines.append(l + ":")
    def text(self): return "\n".join(self.lines) + "\n"

NOK = 0
TS = 0
TSWG = 0
KARG = dict(x=0, ws_re=8, ws_im=16, wd_re=24, wd_im=32, bx=40, w1=48, w2=56, out=64, dbg=72, ws=80)

def srd(a, d, lo, hi, nrec):
    a(f"s_mov_b32 s{d}, s{lo}"); a(f"s_mov_b32 s{d+1}, s{hi}")
    a(f"s_mov_b32 s{d+2}, {nrec}"); a(f"s_mov_b32 s{d+3}, 0x00020000")

def emit_stream(a, name, base_wg, segs, waves, endl):
    a(f"s_sub_u32 s2, s2, {base_wg}")
    a("v_lshrrev_b32 v1, 6, v0"); a("v_and_b32 v0, 63, v0"); a("v_readfirstlane_b32 s3, v1")
    a("v_lshlrev_b32 v0, 4, v0")
    tot = 0
    for i, (karg, nrows, pitch, ipr, RPW, size) in enumerate(segs):
        nw = -(-nrows // (RPW * waves))
        a(f"s_cmp_ge_u32 s2, {nw}")
        a(f"s_cbranch_scc1 {name}_st{i+1}")
        a(f"s_load_dwordx2 s[4:5], s[0:1], {karg}")
        a(f"s_mul_i32 s6, s2, {waves}"); a("s_add_u32 s6, s6, s3"); a(f"s_mul_i32 s6, s6, {RPW*pitch}")
        a("s_waitcnt lgkmcnt(0)")
        a("s_add_u32 s8, s4, s6"); a("s_addc_u32 s9, s5, 0")
        a(f"s_sub_u32 s10, {size}, s6"); a("s_cselect_b32 s10, 0, s10"); a("s_mov_b32 s11, 0x00020000")
        a("s_mov_b32 s7, 0")
        for r in range(RPW):
            for p in range(ipr):
                a(f"buffer_load_dwordx4 v[4:7], v0, s[8:11], s7 offen offset:{p*1024}")
            if r != RPW - 1: a(f"s_add_u32 s7, s7, {pitch}")
        a("s_waitcnt vmcnt(0)")
        a("s_endpgm")
        a.label(f"{name}_st{i+1}")
        a(f"s_sub_u32 s2, s2, {nw}")
        tot += nw
    a(f"s_branch {endl}")
    return tot

def interleave(mf, others, per_gap, start=0):
    out = []; oi = 0
    for i, m in enumerate(mf):
        out.append(m)
        if i >= start:
            n = per_gap(i) if callable(per_gap) else per_gap
            for _ in range(n):
                if oi < len(others): out.append(others[oi]); oi += 1
    out += others[oi:]
    return out

def emit_gemm(a, cfg):
    name = cfg['name']; BM, BN, WM, WN, NS = cfg['BM'], cfg['BN'], cfg['WM'], cfg['WN'], cfg['NS']
    wmode, omode = cfg['wmode'], cfg['out']
    WTM, WTN = BM // WM, BN // WN
    MB, NB = WTM // 16, WTN // 16
    XB = BM * 128; WB = BN * 128; ST = XB + WB
    NXI, NWI = BM // 32, BN // 32; D = NXI + NWI
    Q = BN // 8
    esz = 4 if omode == 'f32' else 2
    v = 1
    def alloc(n, al=1):
        nonlocal v
        v = (v + al - 1) // al * al
        r = v; v += n; return r
    vDX = alloc(NXI); vDW = alloc(NWI)
    vRX = alloc(2); vRW = alloc(2); vAX = alloc(2); vAW = alloc(2)
    vT = alloc(8, 2)
    vO = alloc(1); vPF = alloc(1); vO2 = alloc(1)
    vRes = alloc(MB * NB * 2, 4) if omode == 'res' else None
    fX = [alloc(MB * 4, 4), alloc(MB * 4, 4)]
    fW = [alloc(NB * 4, 4), alloc(NB * 4, 4)]
    acc = alloc(MB * NB * 4, 4)
    nvgpr = v
    assert nvgpr <= 256, nvgpr
    L = lambda s: f"{name}_{s}"
    a.label(f"{name}_kernel")
    a(f"s_cmp_ge_u32 s2, {cfg['nwg']}")
    a(f"s_cbranch_scc1 {L('stream') if cfg.get('stream') else L('end')}")
    a("s_load_dwordx2 s[40:41], s[0:1], 80")
    if TS:
        a("s_mov_b32 s70, s2"); a("s_memtime s[56:57]"); a("s_memrealtime s[64:65]"); a("s_load_dwordx2 s[68:69], s[0:1], 72")
    cfg['setup'](a, L)
    srd(a, 8, 4, 5, 's42'); srd(a, 12, 6, 7, 's43'); srd(a, 16, 36, 37, 's44')
    if omode == 'res': srd(a, 20, 38, 39, 's44')
    t0, t1, t2, t3, t4, t5 = [vT + i for i in range(6)]
    a(f"v_lshrrev_b32 v{t0}, 6, v0")
    a(f"v_and_b32 v0, 63, v0")
    a(f"v_readfirstlane_b32 s29, v{t0}")
    a("s_nop 3")
    a("s_cmp_lt_u32 s29, 4")
    a(f"s_cbranch_scc1 {L('compute')}")
    a("s_sub_u32 s29, s29, 4")
    a(f"v_subrev_u32 v{t0}, 4, v{t0}")
    a("s_setprio 2")
    a(f"v_lshrrev_b32 v{t1}, 3, v0")
    a(f"v_lshl_add_u32 v{t1}, v{t0}, 3, v{t1}")
    a(f"v_bfe_u32 v{t2}, v{t1}, 1, 3")
    a(f"v_and_b32 v{t3}, 7, v0")
    a(f"v_xor_b32 v{t2}, v{t2}, v{t3}")
    a(f"v_lshlrev_b32 v{t2}, 4, v{t2}")
    a(f"v_mul_lo_u32 v{t3}, v{t1}, s31")
    a(f"v_add_u32 v{vDX}, v{t3}, v{t2}")
    a(f"s_lshl_b32 s45, s31, 5")
    for i in range(1, NXI): a(f"v_add_u32 v{vDX+i}, s45, v{vDX+i-1}")
    if wmode == 'kc':
        a(f"v_mul_lo_u32 v{t3}, v{t1}, s32")
        a(f"v_add_u32 v{vDW}, v{t3}, v{t2}")
        a(f"s_lshl_b32 s45, s32, 5")
        for i in range(1, NWI): a(f"v_add_u32 v{vDW+i}, s45, v{vDW+i-1}")
        a("s_movk_i32 s34, 128")
    else:
        for i in range(NWI):
            a(f"v_lshl_add_u32 v{t1}, v{t0}, 6, v0")
            if i: a(f"v_add_u32 v{t1}, {256*i}, v{t1}")
            if Q == 8:
                a(f"v_lshrrev_b32 v{t2}, 3, v{t1}")
                a(f"v_and_b32 v{t3}, 7, v{t1}")
                a(f"v_and_b32 v{t4}, 2, v{t2}")
                a(f"v_bfe_u32 v{t5}, v{t2}, 3, 1")
                a(f"v_lshl_or_b32 v{t4}, v{t5}, 2, v{t4}")
            else:
                assert Q == 28
                a(f"v_mul_u32_u24 v{t2}, 2341, v{t1}")
                a(f"v_lshrrev_b32 v{t2}, 16, v{t2}")
                a(f"v_mul_u32_u24 v{t3}, 28, v{t2}")
                a(f"v_sub_u32 v{t3}, v{t1}, v{t3}")
                a(f"v_bfe_u32 v{t4}, v{t2}, 3, 1")
                a(f"v_lshlrev_b32 v{t4}, 1, v{t4}")
            a(f"v_xor_b32 v{t3}, v{t3}, v{t4}")
            a(f"v_mul_lo_u32 v{t2}, v{t2}, s32")
            a(f"v_lshl_add_u32 v{vDW+i}, v{t3}, 4, v{t2}")
        a("s_lshl_b32 s34, s32, 6")
    def dma_list():
        o = []
        for g in range(D):
            if g == 0: o.append("s_mov_b32 m0, s27")
            else: o.append("s_add_u32 m0, m0, 0x1000")
            o.append("s_nop 0")
            if g < NXI: o.append(f"buffer_load_dwordx4 v{vDX+g}, s[8:11], s25 offen lds")
            else: o.append(f"buffer_load_dwordx4 v{vDW+g-NXI}, s[12:15], s26 offen lds")
        return o + ([] if NOK & 1 else ["s_add_u32 s25, s25, 128"]) + ([] if NOK & 2 else ["s_add_u32 s26, s26, s34"]) + [
                f"s_add_u32 s27, s27, {ST}", f"s_cmp_ge_u32 s27, s48",
                f"s_cselect_b32 s49, {NS*ST}, 0", "s_sub_u32 s27, s27, s49"]
    a("s_mov_b32 s25, 0"); a("s_mov_b32 s26, 0")
    a("s_lshl_b32 s27, s29, 10")
    a(f"s_add_u32 s48, s27, {NS*ST}")
    for t in range(NS):
        for x in dma_list(): a(x)
    a(f"s_waitcnt vmcnt({(NS-1)*D})")
    a("s_barrier")
    a(f"s_sub_u32 s24, s24, {NS}")
    a("s_cmp_eq_u32 s24, 0")
    a(f"s_cbranch_scc1 {L('ltail')}")
    a.label(L('lloop'))
    a(f"s_waitcnt vmcnt({(NS-2)*D})")
    a("s_barrier")
    for x in dma_list(): a(x)
    a("s_sub_u32 s24, s24, 1")
    a("s_cmp_lg_u32 s24, 0")
    a(f"s_cbranch_scc1 {L('lloop')}")
    a.label(L('ltail'))
    for j in range(NS - 1):
        a(f"s_waitcnt vmcnt({(NS-2-j)*D})")
        a("s_barrier")
    a("s_endpgm")
    a.label(L('compute'))
    if wmode == 'kc': a("s_movk_i32 s84, 128")
    else: a("s_lshl_b32 s84, s32, 6")
    t0, t1, t2, t3, t4, t5 = [vT + i for i in range(6)]
    sh = {1: 0, 2: 1, 4: 2}[WN]
    a(f"s_lshr_b32 s46, s29, {sh}")
    a(f"s_and_b32 s47, s29, {WN-1}")
    a(f"v_and_b32 v{t1}, 15, v0")
    a(f"v_lshrrev_b32 v{t2}, 4, v0")
    a(f"v_lshrrev_b32 v{t3}, 1, v{t1}")
    a(f"v_xor_b32 v{t3}, v{t3}, v{t2}")
    a(f"v_lshlrev_b32 v{t3}, 4, v{t3}")
    a(f"v_lshl_add_u32 v{t3}, v{t1}, 7, v{t3}")
    a(f"s_mul_i32 s45, s46, {WTM*128}")
    a(f"v_add_u32 v{vRX}, s45, v{t3}")
    a(f"v_xor_b32 v{vRX+1}, 64, v{vRX}")
    if wmode == 'kc':
        a(f"s_mul_i32 s45, s47, {WTN*128}")
        a(f"s_add_u32 s45, s45, {XB}")
        a(f"v_add_u32 v{vRW}, s45, v{t3}")
        a(f"v_xor_b32 v{vRW+1}, 64, v{vRW}")
    else:
        a(f"v_lshrrev_b32 v{t3}, 2, v{t1}")
        a(f"v_lshl_add_u32 v{t4}, v{t2}, 3, v{t3}")
        if Q == 8:
            a(f"v_and_b32 v{t3}, 2, v{t3}")
            a(f"v_and_b32 v{t5}, 1, v{t2}")
            a(f"v_lshl_or_b32 v{t3}, v{t5}, 2, v{t3}")
        else:
            a(f"v_and_b32 v{t3}, 1, v{t2}")
            a(f"v_lshlrev_b32 v{t3}, 1, v{t3}")
        a(f"v_mul_u32_u24 v{t4}, {Q}, v{t4}")
        a(f"v_bfe_u32 v{t5}, v0, 1, 1")
        for par in range(2):
            a(f"s_mul_i32 s45, s47, {2*NB}")
            a(f"s_add_u32 s45, s45, {2*par}")
            a(f"v_add_u32 v{vRW+par}, s45, v{t5}")
            a(f"v_xor_b32 v{vRW+par}, v{vRW+par}, v{t3}")
            a(f"v_add_u32 v{vRW+par}, v{vRW+par}, v{t4}")
            a(f"v_lshlrev_b32 v{vRW+par}, 4, v{vRW+par}")
            a(f"v_and_b32 v{vT+6}, 1, v0")
            a(f"v_lshl_add_u32 v{vRW+par}, v{vT+6}, 3, v{vRW+par}")
            a(f"v_add_u32 v{vRW+par}, {XB}, v{vRW+par}")
    a(f"s_mul_i32 s45, s46, {WTM}")
    a(f"v_add_u32 v{t1}, s45, v{t1}")
    a(f"v_mul_lo_u32 v{vO}, v{t1}, s33")
    a(f"s_mul_i32 s45, s47, {WTN*esz}")
    a(f"v_lshlrev_b32 v{t2}, {2 + (2 if esz == 4 else 1)}, v{t2}")
    a(f"v_add3_u32 v{vO}, v{vO}, v{t2}, s45")
    if esz == 2:
        a(f"v_sub_u32 v{vO2}, v{vO}, v{t2}")
        a(f"v_bfe_u32 v{t3}, v0, 4, 1"); a(f"v_lshl_add_u32 v{vO2}, v{t3}, 5, v{vO2}")
        a(f"v_lshrrev_b32 v{t3}, 5, v0"); a(f"v_lshl_add_u32 v{vO2}, v{t3}, 4, v{vO2}")
    if omode == 'res':
        assert NB % 2 == 0
        a("s_lshl_b32 s45, s33, 4"); a("s_mov_b32 s46, 0")
        for mb in range(MB):
            for nb in range(0, NB, 2):
                r = vRes + (mb * NB + nb) * 2
                a(f"buffer_load_dwordx4 v[{r}:{r+3}], v{vO2}, s[20:23], s46 offen offset:{nb*32}")
            a("s_add_u32 s46, s46, s45")
    pf = cfg.get('pf')
    if pf:
        PD = pf['PD']
        a("s_cmp_eq_u32 s29, 0")
        for j in range(4): a(f"s_cselect_b32 s{76+j}, s{8+j}, s{12+j}")
        a("s_cselect_b32 s80, 128, s84")
        pf['lanes'](a, vPF, t1, t2, t3)
        a("s_mul_i32 s82, s80, s24"); a("s_sub_u32 s82, s82, s80")
        a(f"s_mul_i32 s81, s80, {NS}")
        for j in range(NS, PD):
            a("s_min_u32 s83, s81, s82")
            a(f"buffer_load_dword v{vT+7}, v{vPF}, s[76:79], s83 offen")
            a("s_add_u32 s81, s81, s80")
    def pf_list():
        if not pf: return []
        return ["s_min_u32 s83, s81, s82", f"buffer_load_dword v{vT+7}, v{vPF}, s[76:79], s83 offen", "s_add_u32 s81, s81, s80"]
    for i in range(MB * NB * 4): a(f"v_mov_b32 v{acc+i}, 0")
    def reads(ks, st):
        o = []
        for mb in range(MB): o.append(f"ds_read_b128 v[{fX[st]+4*mb}:{fX[st]+4*mb+3}], v{vAX+ks} offset:{mb*2048}")
        for nb in range(NB):
            r = fW[st] + 4 * nb
            if wmode == 'kc':
                o.append(f"ds_read_b128 v[{r}:{r+3}], v{vAW+ks} offset:{nb*2048}")
            else:
                for h in range(2):
                    o.append(f"ds_read_b64_tr_b16 v[{r+2*h}:{r+2*h+1}], v{vAW+(nb&1)} offset:{(32*ks+4*h)*Q*16+(nb>>1)*64}")
        return o
    def mfmas(st):
        o = []
        for nb in range(NB):
            for mb in range(MB):
                c = acc + (mb * NB + nb) * 4
                o.append(f"v_mfma_f32_16x16x32_bf16 v[{c}:{c+3}], v[{fW[st]+4*nb}:{fW[st]+4*nb+3}], v[{fX[st]+4*mb}:{fX[st]+4*mb+3}], v[{c}:{c+3}]")
        return o
    def addr_upd():
        return [f"v_add_u32 v{vAX}, s28, v{vRX}", f"v_add_u32 v{vAX+1}, s28, v{vRX+1}",
                f"v_add_u32 v{vAW}, s28, v{vRW}", f"v_add_u32 v{vAW+1}, s28, v{vRW+1}"]
    def rd_adv():
        return [f"s_add_u32 s28, s28, {ST}", f"s_cmp_ge_u32 s28, {NS*ST}",
                f"s_cselect_b32 s49, {NS*ST}, 0", "s_sub_u32 s28, s28, s49"]
    a("s_mov_b32 s28, 0")
    a("s_barrier")
    if TS: a("s_memtime s[58:59]")
    for x in addr_upd(): a(x)
    for x in rd_adv(): a(x)
    for x in reads(0, 0): a(x)
    nm = MB * NB
    def body(do_dma, vm, last):
        a("s_waitcnt lgkmcnt(0)")
        rd = pf_list() + reads(1, 1) if not last else reads(1, 1)
        pg = max(1, -(-len(rd) // max(1, (nm * 2) // 3)))
        for x in interleave(mfmas(0), rd, pg): a(x)
        if last:
            a("s_waitcnt lgkmcnt(0)")
            for x in mfmas(1): a(x)
            return
        a("s_waitcnt lgkmcnt(0)")
        a("s_barrier")
        for x in addr_upd(): a(x)
        oth = reads(0, 0) + rd_adv()
        pg = max(1, -(-len(rd) // max(1, (nm * 2) // 3)))
        for x in interleave(mfmas(1), oth, pg): a(x)
    a("s_sub_u32 s24, s24, 1")
    a.label(L('loop'))
    body(False, 0, False)
    a("s_sub_u32 s24, s24, 1")
    a("s_cmp_lg_u32 s24, 0")
    a(f"s_cbranch_scc1 {L('loop')}")
    body(False, 0, True)
    if TS: a("s_memtime s[60:61]")
    a("s_nop 7"); a("s_nop 1")
    a("s_lshl_b32 s45, s33, 4")
    a("s_mov_b32 s46, 0")
    if omode == 'res':
        a("s_waitcnt vmcnt(0)")
        for mb in range(MB):
            for nb in range(0, NB, 2):
                r = vRes + (mb * NB + nb) * 2
                a(f"v_permlane16_swap_b32 v{r}, v{r+2}"); a(f"v_permlane16_swap_b32 v{r+1}, v{r+3}")
        a("s_nop 1")
    for mb in range(MB):
        st = []
        if omode == 'f32':
            for nb in range(NB):
                c = acc + (mb * NB + nb) * 4
                a(f"buffer_store_dwordx4 v[{c}:{c+3}], v{vO}, s[16:19], s46 offen offset:{nb*64}")
            a("s_add_u32 s46, s46, s45")
            continue
        for nb in range(NB):
            c = acc + (mb * NB + nb) * 4
            if omode == 'relu':
                for i in range(4): a(f"v_max_f32 v{c+i}, 0, v{c+i}")
            if omode == 'res':
                r = vRes + (mb * NB + nb) * 2
                a(f"v_lshlrev_b32 v{vT}, 16, v{r}"); a(f"v_and_b32 v{vT+1}, 0xffff0000, v{r}")
                a(f"v_lshlrev_b32 v{vT+2}, 16, v{r+1}"); a(f"v_and_b32 v{vT+3}, 0xffff0000, v{r+1}")
                for i in range(4): a(f"v_add_f32 v{c+i}, v{c+i}, v{vT+i}")
            d = c if (nb % 2 == 0) else c - 2
            a(f"v_cvt_pk_bf16_f32 v{d}, v{c}, v{c+1}")
            a(f"v_cvt_pk_bf16_f32 v{d+1}, v{c+2}, v{c+3}")
        a("s_nop 1")
        for nb in range(0, NB - 1, 2):
            c = acc + (mb * NB + nb) * 4
            a(f"v_permlane16_swap_b32 v{c}, v{c+2}"); a(f"v_permlane16_swap_b32 v{c+1}, v{c+3}")
        for nb in range(0, NB - 1, 2):
            c = acc + (mb * NB + nb) * 4
            a(f"buffer_store_dwordx4 v[{c}:{c+3}], v{vO2}, s[16:19], s46 offen offset:{nb*32}")
        if NB % 2:
            c = acc + (mb * NB + NB - 1) * 4
            a(f"buffer_store_dwordx2 v[{c}:{c+1}], v{vO}, s[16:19], s46 offen offset:{(NB-1)*32}")
        a("s_add_u32 s46, s46, s45")
    if TS:
        a("s_waitcnt vmcnt(0)"); a("s_memtime s[62:63]"); a("s_memrealtime s[66:67]"); a("s_waitcnt lgkmcnt(0)")
        a(f"s_cmp_lg_u32 s70, {TSWG}"); a(f"s_cbranch_scc1 {L('end')}"); a("s_cmp_lg_u32 s29, 0"); a(f"s_cbranch_scc1 {L('end')}")
        a("s_sub_u32 s58, s58, s56"); a("s_sub_u32 s60, s60, s56"); a("s_sub_u32 s62, s62, s56"); a("s_sub_u32 s66, s66, s64")
        a("s_mov_b32 s70, 256"); a("s_mov_b32 s71, 0x00020000")
        a("s_mov_b32 s72, s68"); a("s_mov_b32 s73, s69"); a("s_mov_b32 s74, 256"); a("s_mov_b32 s75, 0x00020000")
        a("v_mov_b32 v4, s58"); a("v_mov_b32 v5, s60"); a("v_mov_b32 v6, s62"); a("v_mov_b32 v7, s66")
        a(f"v_mov_b32 v1, {cfg.get('tsoff', 0)}")
        a("buffer_store_dwordx4 v[4:7], v1, s[72:75], 0 offen"); a("s_waitcnt vmcnt(0)")
    a.label(L('end'))
    a("s_endpgm")
    extra = 0
    if cfg.get('stream'):
        a.label(L('stream'))
        extra = emit_stream(a, name, cfg['nwg'], cfg['stream'], 8, L('end'))
    cfg['extra'] = extra
    return nvgpr, NS * ST
```

```python
class Asm:
    def __init__(self): self.lines = []
    def __call__(self, s): self.lines.append("    " + s)
    def label(self, l): self.lines.append(l + ":")
    def text(self): return "\n".join(self.lines) + "\n"

NOK = 0
STF = ''
TS = 0
TSWG = 0
KARG = dict(x=0, ws_re=8, ws_im=16, wd_re=24, wd_im=32, bx=40, w1=48, w2=56, out=64, dbg=72, ws=80)

def srd(a, d, lo, hi, nrec):
    a(f"s_mov_b32 s{d}, s{lo}"); a(f"s_mov_b32 s{d+1}, s{hi}")
    a(f"s_mov_b32 s{d+2}, {nrec}"); a(f"s_mov_b32 s{d+3}, 0x00020000")

def emit_stream(a, name, base_wg, segs, waves, endl):
    a(f"s_sub_u32 s2, s2, {base_wg}")
    a("v_lshrrev_b32 v1, 6, v0"); a("v_and_b32 v0, 63, v0"); a("v_readfirstlane_b32 s3, v1")
    a("v_lshlrev_b32 v0, 4, v0")
    tot = 0
    for i, (karg, nrows, pitch, ipr, RPW, size) in enumerate(segs):
        nw = -(-nrows // (RPW * waves))
        a(f"s_cmp_ge_u32 s2, {nw}")
        a(f"s_cbranch_scc1 {name}_st{i+1}")
        a(f"s_load_dwordx2 s[4:5], s[0:1], {karg}")
        a(f"s_mul_i32 s6, s2, {waves}"); a("s_add_u32 s6, s6, s3"); a(f"s_mul_i32 s6, s6, {RPW*pitch}")
        a("s_waitcnt lgkmcnt(0)")
        a("s_add_u32 s8, s4, s6"); a("s_addc_u32 s9, s5, 0")
        a(f"s_sub_u32 s10, {size}, s6"); a("s_cselect_b32 s10, 0, s10"); a("s_mov_b32 s11, 0x00020000")
        a("s_mov_b32 s7, 0")
        for r in range(RPW):
            for p in range(ipr):
                a(f"buffer_load_dwordx4 v[4:7], v0, s[8:11], s7 offen offset:{p*1024}")
            if r != RPW - 1: a(f"s_add_u32 s7, s7, {pitch}")
        a("s_waitcnt vmcnt(0)")
        a("s_endpgm")
        a.label(f"{name}_st{i+1}")
        a(f"s_sub_u32 s2, s2, {nw}")
        tot += nw
    a(f"s_branch {endl}")
    return tot

def interleave(mf, others, per_gap, start=0):
    out = []; oi = 0
    for i, m in enumerate(mf):
        out.append(m)
        if i >= start:
            n = per_gap(i) if callable(per_gap) else per_gap
            for _ in range(n):
                if oi < len(others): out.append(others[oi]); oi += 1
    out += others[oi:]
    return out

def emit_gemm(a, cfg):
    name = cfg['name']; BM, BN, WM, WN, NS = cfg['BM'], cfg['BN'], cfg['WM'], cfg['WN'], cfg['NS']
    wmode, omode = cfg['wmode'], cfg['out']
    WTM, WTN = BM // WM, BN // WN
    MB, NB = WTM // 16, WTN // 16
    XB = BM * 128; WB = BN * 128; ST = XB + WB
    NXI, NWI = BM // 32, BN // 32; D = NXI + NWI
    Q = BN // 8
    esz = 4 if omode == 'f32' else 2
    v = 1
    def alloc(n, al=1):
        nonlocal v
        v = (v + al - 1) // al * al
        r = v; v += n; return r
    vDX = alloc(NXI); vDW = alloc(NWI)
    vRX = alloc(2); vRW = alloc(2); vAX = alloc(2); vAW = alloc(2)
    vT = alloc(8, 2)
    vO = alloc(1); vPF = alloc(1); vO2 = alloc(1)
    vRes = alloc(MB * NB * 2, 4) if omode == 'res' else None
    fX = [alloc(MB * 4, 4), alloc(MB * 4, 4)]
    fW = [alloc(NB * 4, 4), alloc(NB * 4, 4)]
    acc = alloc(MB * NB * 4, 4)
    nvgpr = v
    assert nvgpr <= 256, nvgpr
    L = lambda s: f"{name}_{s}"
    for x in cfg.get('pre', [f"{name}_kernel:"]):
        if x.endswith(':'): a.label(x[:-1])
        else: a(x)
    STF = cfg.get('stf', globals()['STF'])
    sync = cfg.get('signal') or cfg.get('wait')
    a(f"s_cmp_ge_u32 s2, {cfg['nwg']}")
    a(f"s_cbranch_scc1 {L('stream') if cfg.get('stream') else L('end')}")
    a("s_load_dwordx2 s[40:41], s[0:1], 80")
    if sync: a("s_load_dwordx2 s[72:73], s[0:1], 72")
    if TS:
        a("s_mov_b32 s70, s2"); a("s_memtime s[56:57]"); a("s_memrealtime s[64:65]"); a("s_load_dwordx2 s[68:69], s[0:1], 72")
    cfg['setup'](a, L)
    srd(a, 8, 4, 5, 's42'); srd(a, 12, 6, 7, 's43'); srd(a, 16, 36, 37, 's44')
    if omode == 'res': srd(a, 20, 38, 39, 's44')
    if sync:
        a("s_mov_b32 s74, 256"); a("s_mov_b32 s75, 0x00020000"); a("s_lshl_b32 s71, s54, 4")
    t0, t1, t2, t3, t4, t5 = [vT + i for i in range(6)]
    a(f"v_lshrrev_b32 v{t0}, 6, v0")
    a(f"v_and_b32 v0, 63, v0")
    a(f"v_readfirstlane_b32 s29, v{t0}")
    a("s_nop 3")
    a("s_cmp_lt_u32 s29, 4")
    a(f"s_cbranch_scc1 {L('compute')}")
    a("s_sub_u32 s29, s29, 4")
    a(f"v_subrev_u32 v{t0}, 4, v{t0}")
    a("s_setprio 2")
    a(f"v_lshrrev_b32 v{t1}, 3, v0")
    a(f"v_lshl_add_u32 v{t1}, v{t0}, 3, v{t1}")
    a(f"v_bfe_u32 v{t2}, v{t1}, 1, 3")
    a(f"v_and_b32 v{t3}, 7, v0")
    a(f"v_xor_b32 v{t2}, v{t2}, v{t3}")
    a(f"v_lshlrev_b32 v{t2}, 4, v{t2}")
    a(f"v_mul_lo_u32 v{t3}, v{t1}, s31")
    a(f"v_add_u32 v{vDX}, v{t3}, v{t2}")
    a(f"s_lshl_b32 s45, s31, 5")
    for i in range(1, NXI): a(f"v_add_u32 v{vDX+i}, s45, v{vDX+i-1}")
    if wmode == 'kc':
        a(f"v_mul_lo_u32 v{t3}, v{t1}, s32")
        a(f"v_add_u32 v{vDW}, v{t3}, v{t2}")
        a(f"s_lshl_b32 s45, s32, 5")
        for i in range(1, NWI): a(f"v_add_u32 v{vDW+i}, s45, v{vDW+i-1}")
        a("s_movk_i32 s34, 128")
    else:
        for i in range(NWI):
            a(f"v_lshl_add_u32 v{t1}, v{t0}, 6, v0")
            if i: a(f"v_add_u32 v{t1}, {256*i}, v{t1}")
            if Q == 8:
                a(f"v_lshrrev_b32 v{t2}, 3, v{t1}")
                a(f"v_and_b32 v{t3}, 7, v{t1}")
                a(f"v_and_b32 v{t4}, 2, v{t2}")
                a(f"v_bfe_u32 v{t5}, v{t2}, 3, 1")
                a(f"v_lshl_or_b32 v{t4}, v{t5}, 2, v{t4}")
            else:
                assert Q == 28
                a(f"v_mul_u32_u24 v{t2}, 2341, v{t1}")
                a(f"v_lshrrev_b32 v{t2}, 16, v{t2}")
                a(f"v_mul_u32_u24 v{t3}, 28, v{t2}")
                a(f"v_sub_u32 v{t3}, v{t1}, v{t3}")
                a(f"v_bfe_u32 v{t4}, v{t2}, 3, 1")
                a(f"v_lshlrev_b32 v{t4}, 1, v{t4}")
            a(f"v_xor_b32 v{t3}, v{t3}, v{t4}")
            a(f"v_mul_lo_u32 v{t2}, v{t2}, s32")
            a(f"v_lshl_add_u32 v{vDW+i}, v{t3}, 4, v{t2}")
        a("s_lshl_b32 s34, s32, 6")
    def dma_list():
        o = []
        for g in range(D):
            if g == 0: o.append("s_mov_b32 m0, s27")
            else: o.append("s_add_u32 m0, m0, 0x1000")
            o.append("s_nop 0")
            if g < NXI: o.append(f"buffer_load_dwordx4 v{vDX+g}, s[8:11], s25 offen lds")
            else: o.append(f"buffer_load_dwordx4 v{vDW+g-NXI}, s[12:15], s26 offen lds")
        return o + ([] if NOK & 1 else ["s_add_u32 s25, s25, 128"]) + ([] if NOK & 2 else ["s_add_u32 s26, s26, s34"]) + [
                f"s_add_u32 s27, s27, {ST}", f"s_cmp_ge_u32 s27, s48",
                f"s_cselect_b32 s49, {NS*ST}, 0", "s_sub_u32 s27, s27, s49"]
    if cfg.get('wait'):
        a(f"v_mov_b32 v{t1}, s71")
        a.label(L('spin'))
        a(f"buffer_load_dword v{t2}, v{t1}, s[72:75], 0 offen sc0 sc1")
        a("s_waitcnt vmcnt(0)")
        a(f"v_readfirstlane_b32 s45, v{t2}")
        a("s_nop 3")
        a(f"s_cmp_ge_u32 s45, {cfg['wait']}")
        a(f"s_cbranch_scc1 {L('go2')}")
        a("s_sleep 4")
        a(f"s_branch {L('spin')}")
        a.label(L('go2'))
        a("buffer_inv sc1")
    a("s_mov_b32 s25, 0"); a("s_mov_b32 s26, 0")
    a("s_lshl_b32 s27, s29, 10")
    a(f"s_add_u32 s48, s27, {NS*ST}")
    for t in range(NS):
        for x in dma_list(): a(x)
    a(f"s_waitcnt vmcnt({(NS-1)*D})")
    a("s_barrier")
    a(f"s_sub_u32 s24, s24, {NS}")
    a("s_cmp_eq_u32 s24, 0")
    a(f"s_cbranch_scc1 {L('ltail')}")
    a.label(L('lloop'))
    a(f"s_waitcnt vmcnt({(NS-2)*D})")
    a("s_barrier")
    for x in dma_list(): a(x)
    a("s_sub_u32 s24, s24, 1")
    a("s_cmp_lg_u32 s24, 0")
    a(f"s_cbranch_scc1 {L('lloop')}")
    a.label(L('ltail'))
    for j in range(NS - 1):
        a(f"s_waitcnt vmcnt({(NS-2-j)*D})")
        a("s_barrier")
    a("s_endpgm")
    a.label(L('compute'))
    if wmode == 'kc': a("s_movk_i32 s84, 128")
    else: a("s_lshl_b32 s84, s32, 6")
    t0, t1, t2, t3, t4, t5 = [vT + i for i in range(6)]
    sh = {1: 0, 2: 1, 4: 2}[WN]
    a(f"s_lshr_b32 s46, s29, {sh}")
    a(f"s_and_b32 s47, s29, {WN-1}")
    a(f"v_and_b32 v{t1}, 15, v0")
    a(f"v_lshrrev_b32 v{t2}, 4, v0")
    a(f"v_lshrrev_b32 v{t3}, 1, v{t1}")
    a(f"v_xor_b32 v{t3}, v{t3}, v{t2}")
    a(f"v_lshlrev_b32 v{t3}, 4, v{t3}")
    a(f"v_lshl_add_u32 v{t3}, v{t1}, 7, v{t3}")
    a(f"s_mul_i32 s45, s46, {WTM*128}")
    a(f"v_add_u32 v{vRX}, s45, v{t3}")
    a(f"v_xor_b32 v{vRX+1}, 64, v{vRX}")
    if wmode == 'kc':
        a(f"s_mul_i32 s45, s47, {WTN*128}")
        a(f"s_add_u32 s45, s45, {XB}")
        a(f"v_add_u32 v{vRW}, s45, v{t3}")
        a(f"v_xor_b32 v{vRW+1}, 64, v{vRW}")
    else:
        a(f"v_lshrrev_b32 v{t3}, 2, v{t1}")
        a(f"v_lshl_add_u32 v{t4}, v{t2}, 3, v{t3}")
        if Q == 8:
            a(f"v_and_b32 v{t3}, 2, v{t3}")
            a(f"v_and_b32 v{t5}, 1, v{t2}")
            a(f"v_lshl_or_b32 v{t3}, v{t5}, 2, v{t3}")
        else:
            a(f"v_and_b32 v{t3}, 1, v{t2}")
            a(f"v_lshlrev_b32 v{t3}, 1, v{t3}")
        a(f"v_mul_u32_u24 v{t4}, {Q}, v{t4}")
        a(f"v_bfe_u32 v{t5}, v0, 1, 1")
        for par in range(2):
            a(f"s_mul_i32 s45, s47, {2*NB}")
            a(f"s_add_u32 s45, s45, {2*par}")
            a(f"v_add_u32 v{vRW+par}, s45, v{t5}")
            a(f"v_xor_b32 v{vRW+par}, v{vRW+par}, v{t3}")
            a(f"v_add_u32 v{vRW+par}, v{vRW+par}, v{t4}")
            a(f"v_lshlrev_b32 v{vRW+par}, 4, v{vRW+par}")
            a(f"v_and_b32 v{vT+6}, 1, v0")
            a(f"v_lshl_add_u32 v{vRW+par}, v{vT+6}, 3, v{vRW+par}")
            a(f"v_add_u32 v{vRW+par}, {XB}, v{vRW+par}")
    a(f"s_mul_i32 s45, s46, {WTM}")
    a(f"v_add_u32 v{t1}, s45, v{t1}")
    a(f"v_mul_lo_u32 v{vO}, v{t1}, s33")
    a(f"s_mul_i32 s45, s47, {WTN*esz}")
    a(f"v_lshlrev_b32 v{t2}, {2 + (2 if esz == 4 else 1)}, v{t2}")
    a(f"v_add3_u32 v{vO}, v{vO}, v{t2}, s45")
    if esz == 2:
        a(f"v_sub_u32 v{vO2}, v{vO}, v{t2}")
        a(f"v_bfe_u32 v{t3}, v0, 4, 1"); a(f"v_lshl_add_u32 v{vO2}, v{t3}, 5, v{vO2}")
        a(f"v_lshrrev_b32 v{t3}, 5, v0"); a(f"v_lshl_add_u32 v{vO2}, v{t3}, 4, v{vO2}")
    if omode == 'res':
        assert NB % 2 == 0
        a("s_lshl_b32 s45, s33, 4"); a("s_mov_b32 s46, 0")
        for mb in range(MB):
            for nb in range(0, NB, 2):
                r = vRes + (mb * NB + nb) * 2
                a(f"buffer_load_dwordx4 v[{r}:{r+3}], v{vO2}, s[20:23], s46 offen offset:{nb*32}")
            a("s_add_u32 s46, s46, s45")
    pf = cfg.get('pf')
    if pf:
        PD = pf['PD']
        a("s_cmp_eq_u32 s29, 0")
        for j in range(4): a(f"s_cselect_b32 s{76+j}, s{8+j}, s{12+j}")
        a("s_cselect_b32 s80, 128, s84")
        pf['lanes'](a, vPF, t1, t2, t3)
        a("s_mul_i32 s82, s80, s24"); a("s_sub_u32 s82, s82, s80")
        a(f"s_mul_i32 s81, s80, {NS}")
        for j in range(NS, PD):
            a("s_min_u32 s83, s81, s82")
            a(f"buffer_load_dword v{vT+7}, v{vPF}, s[76:79], s83 offen")
            a("s_add_u32 s81, s81, s80")
    def pf_list():
        if not pf: return []
        return ["s_min_u32 s83, s81, s82", f"buffer_load_dword v{vT+7}, v{vPF}, s[76:79], s83 offen", "s_add_u32 s81, s81, s80"]
    for i in range(MB * NB * 4): a(f"v_mov_b32 v{acc+i}, 0")
    def reads(ks, st):
        o = []
        for mb in range(MB): o.append(f"ds_read_b128 v[{fX[st]+4*mb}:{fX[st]+4*mb+3}], v{vAX+ks} offset:{mb*2048}")
        for nb in range(NB):
            r = fW[st] + 4 * nb
            if wmode == 'kc':
                o.append(f"ds_read_b128 v[{r}:{r+3}], v{vAW+ks} offset:{nb*2048}")
            else:
                for h in range(2):
                    o.append(f"ds_read_b64_tr_b16 v[{r+2*h}:{r+2*h+1}], v{vAW+(nb&1)} offset:{(32*ks+4*h)*Q*16+(nb>>1)*64}")
        return o
    def mfmas(st):
        o = []
        for nb in range(NB):
            for mb in range(MB):
                c = acc + (mb * NB + nb) * 4
                o.append(f"v_mfma_f32_16x16x32_bf16 v[{c}:{c+3}], v[{fW[st]+4*nb}:{fW[st]+4*nb+3}], v[{fX[st]+4*mb}:{fX[st]+4*mb+3}], v[{c}:{c+3}]")
        return o
    def addr_upd():
        return [f"v_add_u32 v{vAX}, s28, v{vRX}", f"v_add_u32 v{vAX+1}, s28, v{vRX+1}",
                f"v_add_u32 v{vAW}, s28, v{vRW}", f"v_add_u32 v{vAW+1}, s28, v{vRW+1}"]
    def rd_adv():
        return [f"s_add_u32 s28, s28, {ST}", f"s_cmp_ge_u32 s28, {NS*ST}",
                f"s_cselect_b32 s49, {NS*ST}, 0", "s_sub_u32 s28, s28, s49"]
    a("s_mov_b32 s28, 0")
    a("s_barrier")
    if TS: a("s_memtime s[58:59]")
    for x in addr_upd(): a(x)
    for x in rd_adv(): a(x)
    for x in reads(0, 0): a(x)
    nm = MB * NB
    def body(do_dma, vm, last):
        a("s_waitcnt lgkmcnt(0)")
        rd = pf_list() + reads(1, 1) if not last else reads(1, 1)
        pg = max(1, -(-len(rd) // max(1, (nm * 2) // 3)))
        for x in interleave(mfmas(0), rd, pg): a(x)
        if last:
            a("s_waitcnt lgkmcnt(0)")
            for x in mfmas(1): a(x)
            return
        a("s_waitcnt lgkmcnt(0)")
        a("s_barrier")
        for x in addr_upd(): a(x)
        oth = reads(0, 0) + rd_adv()
        pg = max(1, -(-len(rd) // max(1, (nm * 2) // 3)))
        for x in interleave(mfmas(1), oth, pg): a(x)
    a("s_sub_u32 s24, s24, 1")
    a.label(L('loop'))
    body(False, 0, False)
    a("s_sub_u32 s24, s24, 1")
    a("s_cmp_lg_u32 s24, 0")
    a(f"s_cbranch_scc1 {L('loop')}")
    body(False, 0, True)
    if TS: a("s_memtime s[60:61]")
    a("s_nop 7"); a("s_nop 1")
    a("s_lshl_b32 s45, s33, 4")
    a("s_mov_b32 s46, 0")
    if omode == 'res':
        a("s_waitcnt vmcnt(0)")
        for mb in range(MB):
            for nb in range(0, NB, 2):
                r = vRes + (mb * NB + nb) * 2
                a(f"v_permlane16_swap_b32 v{r}, v{r+2}"); a(f"v_permlane16_swap_b32 v{r+1}, v{r+3}")
        a("s_nop 1")
    for mb in range(MB):
        st = []
        if omode == 'f32':
            for nb in range(NB):
                c = acc + (mb * NB + nb) * 4
                a(f"buffer_store_dwordx4 v[{c}:{c+3}], v{vO}, s[16:19], s46 offen offset:{nb*64}{STF}")
            a("s_add_u32 s46, s46, s45")
            continue
        for nb in range(NB):
            c = acc + (mb * NB + nb) * 4
            if omode == 'relu':
                for i in range(4): a(f"v_max_f32 v{c+i}, 0, v{c+i}")
            if omode == 'res':
                r = vRes + (mb * NB + nb) * 2
                a(f"v_lshlrev_b32 v{vT}, 16, v{r}"); a(f"v_and_b32 v{vT+1}, 0xffff0000, v{r}")
                a(f"v_lshlrev_b32 v{vT+2}, 16, v{r+1}"); a(f"v_and_b32 v{vT+3}, 0xffff0000, v{r+1}")
                for i in range(4): a(f"v_add_f32 v{c+i}, v{c+i}, v{vT+i}")
            d = c if (nb % 2 == 0) else c - 2
            a(f"v_cvt_pk_bf16_f32 v{d}, v{c}, v{c+1}")
            a(f"v_cvt_pk_bf16_f32 v{d+1}, v{c+2}, v{c+3}")
        a("s_nop 1")
        for nb in range(0, NB - 1, 2):
            c = acc + (mb * NB + nb) * 4
            a(f"v_permlane16_swap_b32 v{c}, v{c+2}"); a(f"v_permlane16_swap_b32 v{c+1}, v{c+3}")
        for nb in range(0, NB - 1, 2):
            c = acc + (mb * NB + nb) * 4
            a(f"buffer_store_dwordx4 v[{c}:{c+3}], v{vO2}, s[16:19], s46 offen offset:{nb*32}{STF}")
        if NB % 2:
            c = acc + (mb * NB + NB - 1) * 4
            a(f"buffer_store_dwordx2 v[{c}:{c+1}], v{vO}, s[16:19], s46 offen offset:{(NB-1)*32}{STF}")
        a("s_add_u32 s46, s46, s45")
    if cfg.get('signal'):
        a("s_waitcnt vmcnt(0)")
        a("s_mov_b64 exec, 1")
        a(f"v_mov_b32 v{vT}, s71"); a(f"v_mov_b32 v{vT+1}, 1")
        a(f"buffer_atomic_add v{vT+1}, v{vT}, s[72:75], 0 offen sc1")
        a("s_waitcnt vmcnt(0)")
    if TS:
        a("s_waitcnt vmcnt(0)"); a("s_memtime s[62:63]"); a("s_memrealtime s[66:67]"); a("s_waitcnt lgkmcnt(0)")
        a(f"s_cmp_lg_u32 s70, {TSWG}"); a(f"s_cbranch_scc1 {L('end')}"); a("s_cmp_lg_u32 s29, 0"); a(f"s_cbranch_scc1 {L('end')}")
        a("s_sub_u32 s58, s58, s56"); a("s_sub_u32 s60, s60, s56"); a("s_sub_u32 s62, s62, s56"); a("s_sub_u32 s66, s66, s64")
        a("s_mov_b32 s70, 256"); a("s_mov_b32 s71, 0x00020000")
        a("s_mov_b32 s72, s68"); a("s_mov_b32 s73, s69"); a("s_mov_b32 s74, 256"); a("s_mov_b32 s75, 0x00020000")
        a("v_mov_b32 v4, s58"); a("v_mov_b32 v5, s60"); a("v_mov_b32 v6, s62"); a("v_mov_b32 v7, s66")
        a(f"v_mov_b32 v1, {cfg.get('tsoff', 0)}")
        a("buffer_store_dwordx4 v[4:7], v1, s[72:75], 0 offen"); a("s_waitcnt vmcnt(0)")
    a.label(L('end'))
    a("s_endpgm")
    extra = 0
    if cfg.get('stream'):
        a.label(L('stream'))
        extra = emit_stream(a, name, cfg['nwg'], cfg['stream'], 8, L('end'))
    cfg['extra'] = extra
    return nvgpr, NS * ST
```

```python
import sys, os
from gemm import Asm, emit_gemm, KARG
from rowk import emit_prep, emit_ln2, WS, MB_
NAME = "sequential_preLN__spectral_fnet__dense_activation_relu__prompt"

def add64(a, d, b, off):
    a(f"s_add_u32 s{d}, s{b}, {off}"); a(f"s_addc_u32 s{d+1}, s{b+1}, 0")

def divmod_c(a, q, r, x, d):
    m = -(-65536 // d)
    a(f"s_mul_i32 s{q}, s{x}, {m}"); a(f"s_lshr_b32 s{q}, s{q}, 16")
    a(f"s_mul_i32 s{r}, s{q}, {d}"); a(f"s_sub_u32 s{r}, s{x}, s{r}")

def small_setup(probs, BM, BN, esz):
    def f(a, L):
        p0, p1 = probs
        a("s_lshr_b32 s51, s2, 3"); a("s_and_b32 s50, s2, 3"); a("s_bitcmp1_b32 s2, 2")
        a(f"s_cbranch_scc1 {L('p1')}")
        for i, p in enumerate(probs):
            if i == 1:
                a.label(L('p1'))
            C = -(-p['n'] // 4)
            a(f"s_cmp_ge_u32 s51, {C}"); a(f"s_cbranch_scc1 {L('end')}")
            a(f"s_mul_i32 s2, s50, {C}"); a("s_add_u32 s2, s2, s51")
            a(f"s_cmp_ge_u32 s2, {p['n']}"); a(f"s_cbranch_scc1 {L('end')}")
            if p['X'][0] is not None: a(f"s_load_dwordx2 s[4:5], s[0:1], {KARG[p['X'][0]]}")
            if p['W'][0] is not None: a(f"s_load_dwordx2 s[6:7], s[0:1], {KARG[p['W'][0]]}")
            divmod_c(a, 50, 51, 2, p['nN'])
            a(f"s_mov_b32 s31, {p['ldx']}"); a(f"s_mov_b32 s32, {p['ldw']}"); a(f"s_mov_b32 s33, {p['ldo']}")
            a(f"s_mov_b32 s24, {p['KT']}")
            a("s_waitcnt lgkmcnt(0)")
            a(f"s_mul_i32 s52, s50, {BM*p['ldx']}")
            a(f"s_sub_u32 s42, {p['xsize']}, s52")
            if p['X'][0] is None:
                a(f"s_add_u32 s52, s52, {p['X'][1]}"); add64(a, 4, 40, "s52")
            else: add64(a, 4, 4, "s52")
            a(f"s_mul_i32 s52, s51, {BN*p['ldw']}")
            a(f"s_sub_u32 s43, {p['wsize']}, s52")
            if p['W'][0] is None:
                a(f"s_add_u32 s52, s52, {p['W'][1]}"); add64(a, 6, 40, "s52")
            else: add64(a, 6, 6, "s52")
            a(f"s_mul_i32 s52, s50, {BM*p['ldo']}")
            a(f"s_mul_i32 s53, s51, {BN*esz}")
            a("s_add_u32 s52, s52, s53")
            a(f"s_sub_u32 s44, {p['osize']}, s52")
            a(f"s_add_u32 s52, s52, {p['O']}"); add64(a, 36, 40, "s52")
            if i == 0: a(f"s_branch {L('go')}")
        a.label(L('go'))
    return f

H1P = 7168
HNP = 2048
def big_setup(which):
    def f(a, L):
        a("s_and_b32 s50, s2, 7"); a("s_lshr_b32 s51, s2, 3")
        if which == 1:
            a("s_and_b32 s52, s50, 1"); a("s_lshl_b32 s52, s52, 3"); a("s_and_b32 s53, s51, 7"); a("s_add_u32 s54, s52, s53")
            a("s_lshr_b32 s52, s50, 1"); a("s_lshl_b32 s52, s52, 2"); a("s_lshr_b32 s53, s51, 3"); a("s_add_u32 s55, s52, s53")
            BM, BN, ldx, ldw, ldo, KT = 128, 224, HNP, 7168, H1P, 16
            a(f"s_load_dwordx2 s[6:7], s[0:1], {KARG['w1']}")
            xoff, xsz, wsz, osz = WS['HN'], 2048 * HNP, 1024 * 7168, 2048 * H1P
        else:
            a("s_and_b32 s52, s50, 3"); a("s_lshl_b32 s52, s52, 2"); a("s_and_b32 s53, s51, 3"); a("s_add_u32 s54, s52, s53")
            a("s_lshr_b32 s52, s50, 2"); a("s_lshl_b32 s52, s52, 3"); a("s_lshr_b32 s53, s51, 2"); a("s_add_u32 s55, s52, s53")
            BM, BN, ldx, ldw, ldo, KT = 128, 64, H1P, 2048, 2048, 56
            a(f"s_load_dwordx2 s[6:7], s[0:1], {KARG['w2']}")
            a(f"s_load_dwordx2 s[36:37], s[0:1], {KARG['out']}")
            xoff, xsz, wsz, osz = WS['H1'], 2048 * H1P, 3584 * 2048, 4 * MB_
        a(f"s_mov_b32 s31, {ldx}"); a(f"s_mov_b32 s32, {ldw}"); a(f"s_mov_b32 s33, {ldo}"); a(f"s_mov_b32 s24, {KT}")
        a("s_waitcnt lgkmcnt(0)")
        a(f"s_mul_i32 s52, s54, {BM*ldx}"); a(f"s_sub_u32 s42, {xsz}, s52")
        a(f"s_add_u32 s52, s52, {xoff}"); add64(a, 4, 40, "s52")
        a(f"s_mul_i32 s52, s55, {BN*2}"); a(f"s_sub_u32 s43, {wsz}, s52"); add64(a, 6, 6, "s52")
        a(f"s_mul_i32 s52, s54, {BM*ldo}"); a(f"s_mul_i32 s53, s55, {BN*2}"); a("s_add_u32 s52, s52, s53")
        a(f"s_sub_u32 s44, {osz}, s52")
        if which == 1:
            a(f"s_add_u32 s52, s52, {WS['H1']}"); add64(a, 36, 40, "s52")
        else:
            add64(a, 36, 36, "s52")
            a(f"s_add_u32 s52, s52, {WS['H']}"); add64(a, 38, 40, "s52")
    return f

def pf_lanes(which):
    def f(a, vPF, t1, t2, t3):
        if which == 1:
            a("s_lshr_b32 s45, s51, 3"); a("s_lshl_b32 s45, s45, 5")
            a(f"v_add_u32 v{t1}, s45, v0"); a(f"v_mul_lo_u32 v{t1}, v{t1}, s31")
            a(f"v_mov_b32 v{t3}, 0xf0000000")
            a(f"v_cmp_gt_u32 vcc, 32, v0"); a(f"v_cndmask_b32 v{t1}, v{t3}, v{t1}, vcc")
            a("s_and_b32 s45, s51, 7"); a("s_lshl_b32 s45, s45, 3")
            a(f"v_lshrrev_b32 v{t2}, 3, v0"); a(f"v_add_u32 v{t2}, s45, v{t2}"); a(f"v_mul_lo_u32 v{t2}, v{t2}, s32")
            a(f"v_and_b32 v{vPF}, 7, v0"); a(f"v_cmp_gt_u32 vcc, 7, v{vPF}")
            a(f"v_lshl_add_u32 v{t2}, v{vPF}, 6, v{t2}"); a(f"v_cndmask_b32 v{t2}, v{t3}, v{t2}, vcc")
        else:
            a("s_lshr_b32 s45, s51, 2"); a("s_lshl_b32 s45, s45, 4")
            a(f"v_add_u32 v{t1}, s45, v0"); a(f"v_mul_lo_u32 v{t1}, v{t1}, s31")
            a("s_and_b32 s45, s51, 3"); a("s_lshl_b32 s45, s45, 4")
            a(f"v_add_u32 v{t2}, s45, v0"); a(f"v_mul_lo_u32 v{t2}, v{t2}, s32")
            a(f"v_mov_b32 v{t3}, 0xf0000000")
            a(f"v_cmp_gt_u32 vcc, 16, v0")
            a(f"v_cndmask_b32 v{t1}, v{t3}, v{t1}, vcc"); a(f"v_cndmask_b32 v{t2}, v{t3}, v{t2}, vcc")
        a("s_cmp_eq_u32 s29, 0"); a("s_cselect_b64 vcc, -1, 0")
        a(f"v_cndmask_b32 v{vPF}, v{t2}, v{t1}, vcc")
        a("s_cmp_lt_u32 s29, 2"); a("s_cselect_b64 vcc, -1, 0")
        a(f"v_cndmask_b32 v{vPF}, v{t3}, v{vPF}, vcc")
    return f

def kernel_wrap(name, body, nv):
    nvr = (nv + 7) // 8 * 8
    hdr = f".globl {name}\n.p2align 8\n.type {name},@function\n"
    desc = f""".amdhsa_kernel {name}
  .amdhsa_next_free_vgpr {nvr}
  .amdhsa_next_free_sgpr 96
  .amdhsa_accum_offset {max(4,(nvr+3)//4*4)}
  .amdhsa_group_segment_fixed_size 0
  .amdhsa_kernarg_size 88
  .amdhsa_user_sgpr_count 2
  .amdhsa_user_sgpr_kernarg_segment_ptr 1
  .amdhsa_system_sgpr_workgroup_id_x 1
.end_amdhsa_kernel
"""
    return hdr + body, desc

def build(opts):
    global H1P
    H1P = opts.get('h1p', 7168)
    import gemm; gemm.NOK = opts.get('nok', 0); gemm.STF = ['', ' nt', ' sc1', ' sc0 sc1'][opts.get('stf', 0)]; gemm.TS = opts.get('ts', 0); gemm.TSWG = opts.get('tswg', 0)
    ks = []
    SM = opts.get('SM', 7)
    R1 = opts.get('R1', 3); R2 = opts.get('R2', 8)
    dft = [(KARG['wd_re'], 576, 2048, 2, 2*R1, 2*MB_), (KARG['wd_im'], 576, 2048, 2, 2*R1, 2*MB_), (KARG['ws_re'], 1056, 4096, 3, R1, 8*MB_), (KARG['ws_im'], 1056, 4096, 2, R1, 8*MB_)]
    wseg = lambda k: [(KARG[k], 7168, 1024, 1, R2, 7168*1024)]
    a = Asm(); nv, ex = emit_prep(a, dft if SM & 1 else None); ks.append(("prep_kernel", a.text(), nv, 272 + ex, 0))
    NSs = opts.get('NSs', 4)
    pa = [dict(n=102, nN=17, X=('wd_re', 0), ldx=2048, xsize=2*MB_, W=(None, WS['EE']), ldw=1152, wsize=1088*1152, O=WS['GT'], ldo=2176, osize=576*2176, KT=9),
          dict(n=96, nN=16, X=('wd_im', 0), ldx=2048, xsize=2*MB_, W=(None, WS['OO']), ldw=1024, wsize=1024*1024, O=WS['HT'], ldo=2048, osize=576*2048, KT=8)]
    cf = dict(stream=(wseg('w1') if SM & 2 else None), name='ga', tsoff=0, BM=96, BN=64, WM=2, WN=2, NS=NSs, wmode='kc', out='bf16', nwg=208, setup=small_setup(pa, 96, 64, 2))
    a = Asm(); nv, lds = emit_gemm(a, cf)
    ks.append(("ga_kernel", a.text(), nv, 208 + cf['extra'], lds))
    pb = [dict(n=99, nN=9, X=('ws_re', 0), ldx=4096, xsize=8*MB_, W=(None, WS['GT']), ldw=2176, wsize=576*2176, O=WS['P'], ldo=2304, osize=1056*2304, KT=17),
          dict(n=88, nN=8, X=('ws_im', 0), ldx=4096, xsize=8*MB_, W=(None, WS['HT']), ldw=2048, wsize=576*2048, O=WS['Q'], ldo=2048, osize=1056*2048, KT=16)]
    cf = dict(stream=(wseg('w2') if SM & 4 else None), name='gb', tsoff=16, BM=96, BN=64, WM=2, WN=2, NS=NSs, wmode='kc', out='f32', nwg=200, setup=small_setup(pb, 96, 64, 4))
    a = Asm(); nv, lds = emit_gemm(a, cf)
    ks.append(("gb_kernel", a.text(), nv, 200 + cf['extra'], lds))
    a = Asm(); nv = emit_ln2(a); ks.append(("ln2_kernel", a.text(), nv, 512, 0))
    FU = opts.get('FU', 1)
    c1 = dict(name='g1', tsoff=32, BM=128, BN=224, WM=2, WN=2, NS=3, wmode='nc', out='relu', nwg=256, setup=big_setup(1))
    c2 = dict(name='g2', tsoff=48, BM=128, BN=64, WM=2, WN=2, NS=opts.get('NS2', 6), wmode='nc', out='res', nwg=256, setup=big_setup(2))
    if FU:
        c1.update(pre=["g12_kernel:", "s_cmp_ge_u32 s2, 256", "s_cbranch_scc1 g2_entry"], signal=True, stf=' sc1')
        c2.update(pre=["g2_entry:", "s_sub_u32 s2, s2, 256"], wait=64)
        a = Asm(); nv1, lds1 = emit_gemm(a, c1); nv2, lds2 = emit_gemm(a, c2)
        ks.append(("g12_kernel", a.text(), max(nv1, nv2), 512, max(lds1, lds2)))
    else:
        a = Asm(); nv, lds = emit_gemm(a, c1); ks.append(("g1_kernel", a.text(), nv, 256, lds))
        a = Asm(); nv, lds = emit_gemm(a, c2); ks.append(("g2_kernel", a.text(), nv, 256, lds))
    sel = opts.get('only')
    ref = open(f"cdna_kernels/{NAME}.s.ref").read().split("\n")
    hdr = [l for l in ref if l.startswith(";") and "@launch" not in l and "Override" not in l and "grid=ceil" not in l]
    hdr = hdr[:12]
    out = "\n".join(hdr) + "\n"
    for (n, _, nv, g, lds) in ks:
        if sel and n not in sel: continue
        out += f"; @launch kernel={n} grid=({g},1,1) block=({512 if n in ('ga_kernel','gb_kernel','g1_kernel','g2_kernel','g12_kernel') else 256},1,1) lds={lds}\n"
    out += '.amdgcn_target "amdgcn-amd-amdhsa--gfx950"\n.text\n'
    descs = ""
    for (n, body, nv, g, lds) in ks:
        t, d = kernel_wrap(n, body, nv); out += t; descs += d.replace(".amdhsa_kernel", ".p2align 6\n.amdhsa_kernel", 1)
    out += '.section .rodata,"a"\n' + descs
    return out

if __name__ == "__main__":
    opts = {}
    for x in sys.argv[2:]:
        k, v = x.split("=")
        opts[k] = v.split(",") if k == 'only' else int(v)
    open(sys.argv[1], "w").write(build(opts))
```

```python
class Asm:
    def __init__(self): self.lines = []
    def __call__(self, s): self.lines.append("    " + s)
    def label(self, l): self.lines.append(l + ":")
    def text(self): return "\n".join(self.lines) + "\n"

SLP = 4
NOINV = 0
NOK = 0
PGS = 4
STF = ''
TS = 0
TSWG = 0
KARG = dict(x=0, ws_re=8, ws_im=16, wd_re=24, wd_im=32, bx=40, w1=48, w2=56, out=64, dbg=72, ws=80)

def srd(a, d, lo, hi, nrec):
    a(f"s_mov_b32 s{d}, s{lo}"); a(f"s_mov_b32 s{d+1}, s{hi}")
    a(f"s_mov_b32 s{d+2}, {nrec}"); a(f"s_mov_b32 s{d+3}, 0x00020000")

def emit_stream(a, name, base_wg, segs, waves, endl):
    a(f"s_sub_u32 s2, s2, {base_wg}")
    a("v_lshrrev_b32 v1, 6, v0"); a("v_and_b32 v0, 63, v0"); a("v_readfirstlane_b32 s3, v1")
    a("v_lshlrev_b32 v0, 4, v0")
    tot = 0
    for i, (karg, nrows, pitch, ipr, RPW, size) in enumerate(segs):
        nw = -(-nrows // (RPW * waves))
        a(f"s_cmp_ge_u32 s2, {nw}")
        a(f"s_cbranch_scc1 {name}_st{i+1}")
        a(f"s_load_dwordx2 s[4:5], s[0:1], {karg}")
        a(f"s_mul_i32 s6, s2, {waves}"); a("s_add_u32 s6, s6, s3"); a(f"s_mul_i32 s6, s6, {RPW*pitch}")
        a("s_waitcnt lgkmcnt(0)")
        a("s_add_u32 s8, s4, s6"); a("s_addc_u32 s9, s5, 0")
        a(f"s_sub_u32 s10, {size}, s6"); a("s_cselect_b32 s10, 0, s10"); a("s_mov_b32 s11, 0x00020000")
        a("s_mov_b32 s7, 0")
        for r in range(RPW):
            for p in range(ipr):
                a(f"buffer_load_dwordx4 v[4:7], v0, s[8:11], s7 offen offset:{p*1024}")
            if r != RPW - 1: a(f"s_add_u32 s7, s7, {pitch}")
        a("s_waitcnt vmcnt(0)")
        a("s_endpgm")
        a.label(f"{name}_st{i+1}")
        a(f"s_sub_u32 s2, s2, {nw}")
        tot += nw
    a(f"s_branch {endl}")
    return tot

def interleave(mf, others, per_gap, start=0):
    out = []; oi = 0
    for i, m in enumerate(mf):
        out.append(m)
        if i >= start:
            n = per_gap(i) if callable(per_gap) else per_gap
            for _ in range(n):
                if oi < len(others): out.append(others[oi]); oi += 1
    out += others[oi:]
    return out

def emit_gemm(a, cfg):
    name = cfg['name']; BM, BN, WM, WN, NS = cfg['BM'], cfg['BN'], cfg['WM'], cfg['WN'], cfg['NS']
    wmode, omode = cfg['wmode'], cfg['out']
    WTM, WTN = BM // WM, BN // WN
    MB, NB = WTM // 16, WTN // 16
    XB = BM * 128; WB = BN * 128; ST = XB + WB
    NXI, NWI = BM // 32, BN // 32; D = NXI + NWI
    Q = BN // 8
    esz = 4 if omode == 'f32' else 2
    v = 1
    def alloc(n, al=1):
        nonlocal v
        v = (v + al - 1) // al * al
        r = v; v += n; return r
    vDX = alloc(NXI); vDW = alloc(NWI)
    vRX = alloc(2); vRW = alloc(2); vAX = alloc(2); vAW = alloc(2)
    vT = alloc(8, 2)
    vO = alloc(1); vPF = alloc(1); vO2 = alloc(1)
    vRes = alloc(MB * NB * 2, 4) if omode == 'res' else None
    fX = [alloc(MB * 4, 4), alloc(MB * 4, 4)]
    fW = [alloc(NB * 4, 4), alloc(NB * 4, 4)]
    acc = alloc(MB * NB * 4, 4)
    nvgpr = v
    assert nvgpr <= 256, nvgpr
    L = lambda s: f"{name}_{s}"
    for x in cfg.get('pre', [f"{name}_kernel:"]):
        if x.endswith(':'): a.label(x[:-1])
        else: a(x)
    STF = cfg.get('stf', globals()['STF'])
    sync = cfg.get('signal') or cfg.get('wait')
    a(f"s_cmp_ge_u32 s2, {cfg['nwg']}")
    a(f"s_cbranch_scc1 {L('stream') if cfg.get('stream') else L('end')}")
    a("s_load_dwordx2 s[40:41], s[0:1], 80")
    if sync: a("s_load_dwordx2 s[72:73], s[0:1], 72")
    if TS:
        a("s_mov_b32 s70, s2"); a("s_memtime s[56:57]"); a("s_memrealtime s[64:65]"); a("s_load_dwordx2 s[68:69], s[0:1], 72")
    cfg['setup'](a, L)
    srd(a, 8, 4, 5, 's42'); srd(a, 12, 6, 7, 's43'); srd(a, 16, 36, 37, 's44')
    if omode == 'res': srd(a, 20, 38, 39, 's44')
    if sync:
        a("s_mov_b32 s74, 256"); a("s_mov_b32 s75, 0x00020000"); a("s_lshl_b32 s71, s54, 4")
    t0, t1, t2, t3, t4, t5 = [vT + i for i in range(6)]
    a(f"v_lshrrev_b32 v{t0}, 6, v0")
    a(f"v_and_b32 v0, 63, v0")
    a(f"v_readfirstlane_b32 s29, v{t0}")
    a("s_nop 3")
    a("s_cmp_lt_u32 s29, 4")
    a(f"s_cbranch_scc1 {L('compute')}")
    a("s_sub_u32 s29, s29, 4")
    a(f"v_subrev_u32 v{t0}, 4, v{t0}")
    a("s_setprio 2")
    a(f"v_lshrrev_b32 v{t1}, 3, v0")
    a(f"v_lshl_add_u32 v{t1}, v{t0}, 3, v{t1}")
    a(f"v_bfe_u32 v{t2}, v{t1}, 1, 3")
    a(f"v_and_b32 v{t3}, 7, v0")
    a(f"v_xor_b32 v{t2}, v{t2}, v{t3}")
    a(f"v_lshlrev_b32 v{t2}, 4, v{t2}")
    a(f"v_mul_lo_u32 v{t3}, v{t1}, s31")
    a(f"v_add_u32 v{vDX}, v{t3}, v{t2}")
    a(f"s_lshl_b32 s45, s31, 5")
    for i in range(1, NXI): a(f"v_add_u32 v{vDX+i}, s45, v{vDX+i-1}")
    if wmode == 'kc':
        a(f"v_mul_lo_u32 v{t3}, v{t1}, s32")
        a(f"v_add_u32 v{vDW}, v{t3}, v{t2}")
        a(f"s_lshl_b32 s45, s32, 5")
        for i in range(1, NWI): a(f"v_add_u32 v{vDW+i}, s45, v{vDW+i-1}")
        a("s_movk_i32 s34, 128")
    else:
        for i in range(NWI):
            a(f"v_lshl_add_u32 v{t1}, v{t0}, 6, v0")
            if i: a(f"v_add_u32 v{t1}, {256*i}, v{t1}")
            if Q == 8:
                a(f"v_lshrrev_b32 v{t2}, 3, v{t1}")
                a(f"v_and_b32 v{t3}, 7, v{t1}")
                a(f"v_and_b32 v{t4}, 2, v{t2}")
                a(f"v_bfe_u32 v{t5}, v{t2}, 3, 1")
                a(f"v_lshl_or_b32 v{t4}, v{t5}, 2, v{t4}")
            else:
                assert Q == 28
                a(f"v_mul_u32_u24 v{t2}, 2341, v{t1}")
                a(f"v_lshrrev_b32 v{t2}, 16, v{t2}")
                a(f"v_mul_u32_u24 v{t3}, 28, v{t2}")
                a(f"v_sub_u32 v{t3}, v{t1}, v{t3}")
                a(f"v_bfe_u32 v{t4}, v{t2}, 3, 1")
                a(f"v_lshlrev_b32 v{t4}, 1, v{t4}")
            a(f"v_xor_b32 v{t3}, v{t3}, v{t4}")
            a(f"v_mul_lo_u32 v{t2}, v{t2}, s32")
            a(f"v_lshl_add_u32 v{vDW+i}, v{t3}, 4, v{t2}")
        a("s_lshl_b32 s34, s32, 6")
    def dma_list():
        o = []
        for g in range(D):
            if g == 0: o.append("s_mov_b32 m0, s27")
            else: o.append("s_add_u32 m0, m0, 0x1000")
            o.append("s_nop 0")
            if g < NXI: o.append(f"buffer_load_dwordx4 v{vDX+g}, s[8:11], s25 offen lds")
            else: o.append(f"buffer_load_dwordx4 v{vDW+g-NXI}, s[12:15], s26 offen lds")
        return o + ([] if NOK & 1 else ["s_add_u32 s25, s25, 128"]) + ([] if NOK & 2 else ["s_add_u32 s26, s26, s34"]) + [
                f"s_add_u32 s27, s27, {ST}", f"s_cmp_ge_u32 s27, s48",
                f"s_cselect_b32 s49, {NS*ST}, 0", "s_sub_u32 s27, s27, s49"]
    if cfg.get('wait'):
        a(f"v_mov_b32 v{t1}, s71")
        a.label(L('spin'))
        a(f"buffer_load_dword v{t2}, v{t1}, s[72:75], 0 offen sc0 sc1")
        a("s_waitcnt vmcnt(0)")
        a(f"v_readfirstlane_b32 s45, v{t2}")
        a("s_nop 3")
        a(f"s_cmp_ge_u32 s45, {cfg['wait']}")
        a(f"s_cbranch_scc1 {L('go2')}")
        a(f"s_sleep {SLP}")
        a(f"s_branch {L('spin')}")
        a.label(L('go2'))
        if not NOINV: a("buffer_inv sc1")
    a("s_mov_b32 s25, 0"); a("s_mov_b32 s26, 0")
    a("s_lshl_b32 s27, s29, 10")
    a(f"s_add_u32 s48, s27, {NS*ST}")
    for t in range(NS):
        for x in dma_list(): a(x)
    a(f"s_waitcnt vmcnt({(NS-1)*D})")
    a("s_barrier")
    a(f"s_sub_u32 s24, s24, {NS}")
    a("s_cmp_eq_u32 s24, 0")
    a(f"s_cbranch_scc1 {L('ltail')}")
    a.label(L('lloop'))
    a(f"s_waitcnt vmcnt({(NS-2)*D})")
    a("s_barrier")
    for x in dma_list(): a(x)
    a("s_sub_u32 s24, s24, 1")
    a("s_cmp_lg_u32 s24, 0")
    a(f"s_cbranch_scc1 {L('lloop')}")
    a.label(L('ltail'))
    for j in range(NS - 1):
        a(f"s_waitcnt vmcnt({(NS-2-j)*D})")
        a("s_barrier")
    a("s_endpgm")
    a.label(L('compute'))
    if wmode == 'kc': a("s_movk_i32 s84, 128")
    else: a("s_lshl_b32 s84, s32, 6")
    t0, t1, t2, t3, t4, t5 = [vT + i for i in range(6)]
    sh = {1: 0, 2: 1, 4: 2}[WN]
    a(f"s_lshr_b32 s46, s29, {sh}")
    a(f"s_and_b32 s47, s29, {WN-1}")
    a(f"v_and_b32 v{t1}, 15, v0")
    a(f"v_lshrrev_b32 v{t2}, 4, v0")
    a(f"v_lshrrev_b32 v{t3}, 1, v{t1}")
    a(f"v_xor_b32 v{t3}, v{t3}, v{t2}")
    a(f"v_lshlrev_b32 v{t3}, 4, v{t3}")
    a(f"v_lshl_add_u32 v{t3}, v{t1}, 7, v{t3}")
    a(f"s_mul_i32 s45, s46, {WTM*128}")
    a(f"v_add_u32 v{vRX}, s45, v{t3}")
    a(f"v_xor_b32 v{vRX+1}, 64, v{vRX}")
    if wmode == 'kc':
        a(f"s_mul_i32 s45, s47, {WTN*128}")
        a(f"s_add_u32 s45, s45, {XB}")
        a(f"v_add_u32 v{vRW}, s45, v{t3}")
        a(f"v_xor_b32 v{vRW+1}, 64, v{vRW}")
    else:
        a(f"v_lshrrev_b32 v{t3}, 2, v{t1}")
        a(f"v_lshl_add_u32 v{t4}, v{t2}, 3, v{t3}")
        if Q == 8:
            a(f"v_and_b32 v{t3}, 2, v{t3}")
            a(f"v_and_b32 v{t5}, 1, v{t2}")
            a(f"v_lshl_or_b32 v{t3}, v{t5}, 2, v{t3}")
        else:
            a(f"v_and_b32 v{t3}, 1, v{t2}")
            a(f"v_lshlrev_b32 v{t3}, 1, v{t3}")
        a(f"v_mul_u32_u24 v{t4}, {Q}, v{t4}")
        a(f"v_bfe_u32 v{t5}, v0, 1, 1")
        for par in range(2):
            a(f"s_mul_i32 s45, s47, {2*NB}")
            a(f"s_add_u32 s45, s45, {2*par}")
            a(f"v_add_u32 v{vRW+par}, s45, v{t5}")
            a(f"v_xor_b32 v{vRW+par}, v{vRW+par}, v{t3}")
            a(f"v_add_u32 v{vRW+par}, v{vRW+par}, v{t4}")
            a(f"v_lshlrev_b32 v{vRW+par}, 4, v{vRW+par}")
            a(f"v_and_b32 v{vT+6}, 1, v0")
            a(f"v_lshl_add_u32 v{vRW+par}, v{vT+6}, 3, v{vRW+par}")
            a(f"v_add_u32 v{vRW+par}, {XB}, v{vRW+par}")
    a(f"s_mul_i32 s45, s46, {WTM}")
    a(f"v_add_u32 v{t1}, s45, v{t1}")
    a(f"v_mul_lo_u32 v{vO}, v{t1}, s33")
    a(f"s_mul_i32 s45, s47, {WTN*esz}")
    a(f"v_lshlrev_b32 v{t2}, {2 + (2 if esz == 4 else 1)}, v{t2}")
    a(f"v_add3_u32 v{vO}, v{vO}, v{t2}, s45")
    if esz == 2:
        a(f"v_sub_u32 v{vO2}, v{vO}, v{t2}")
        a(f"v_bfe_u32 v{t3}, v0, 4, 1"); a(f"v_lshl_add_u32 v{vO2}, v{t3}, 5, v{vO2}")
        a(f"v_lshrrev_b32 v{t3}, 5, v0"); a(f"v_lshl_add_u32 v{vO2}, v{t3}, 4, v{vO2}")
    if omode == 'res':
        assert NB % 2 == 0
        a("s_lshl_b32 s45, s33, 4"); a("s_mov_b32 s46, 0")
        for mb in range(MB):
            for nb in range(0, NB, 2):
                r = vRes + (mb * NB + nb) * 2
                a(f"buffer_load_dwordx4 v[{r}:{r+3}], v{vO2}, s[20:23], s46 offen offset:{nb*32}")
            a("s_add_u32 s46, s46, s45")
    pf = cfg.get('pf')
    if pf:
        PD = pf['PD']
        a("s_cmp_eq_u32 s29, 0")
        for j in range(4): a(f"s_cselect_b32 s{76+j}, s{8+j}, s{12+j}")
        a("s_cselect_b32 s80, 128, s84")
        pf['lanes'](a, vPF, t1, t2, t3)
        a("s_mul_i32 s82, s80, s24"); a("s_sub_u32 s82, s82, s80")
        a(f"s_mul_i32 s81, s80, {NS}")
        for j in range(NS, PD):
            a("s_min_u32 s83, s81, s82")
            a(f"buffer_load_dword v{vT+7}, v{vPF}, s[76:79], s83 offen")
            a("s_add_u32 s81, s81, s80")
    def pf_list():
        if not pf: return []
        return ["s_min_u32 s83, s81, s82", f"buffer_load_dword v{vT+7}, v{vPF}, s[76:79], s83 offen", "s_add_u32 s81, s81, s80"]
    for i in range(MB * NB * 4): a(f"v_mov_b32 v{acc+i}, 0")
    def reads(ks, st):
        o = []
        for mb in range(MB): o.append(f"ds_read_b128 v[{fX[st]+4*mb}:{fX[st]+4*mb+3}], v{vAX+ks} offset:{mb*2048}")
        for nb in range(NB):
            r = fW[st] + 4 * nb
            if wmode == 'kc':
                o.append(f"ds_read_b128 v[{r}:{r+3}], v{vAW+ks} offset:{nb*2048}")
            else:
                for h in range(2):
                    o.append(f"ds_read_b64_tr_b16 v[{r+2*h}:{r+2*h+1}], v{vAW+(nb&1)} offset:{(32*ks+4*h)*Q*16+(nb>>1)*64}")
        return o
    def mfmas(st):
        o = []
        for nb in range(NB):
            for mb in range(MB):
                c = acc + (mb * NB + nb) * 4
                o.append(f"v_mfma_f32_16x16x32_bf16 v[{c}:{c+3}], v[{fW[st]+4*nb}:{fW[st]+4*nb+3}], v[{fX[st]+4*mb}:{fX[st]+4*mb+3}], v[{c}:{c+3}]")
        return o
    def addr_upd():
        return [f"v_add_u32 v{vAX}, s28, v{vRX}", f"v_add_u32 v{vAX+1}, s28, v{vRX+1}",
                f"v_add_u32 v{vAW}, s28, v{vRW}", f"v_add_u32 v{vAW+1}, s28, v{vRW+1}"]
    def rd_adv():
        return [f"s_add_u32 s28, s28, {ST}", f"s_cmp_ge_u32 s28, {NS*ST}",
                f"s_cselect_b32 s49, {NS*ST}, 0", "s_sub_u32 s28, s28, s49"]
    a("s_mov_b32 s28, 0")
    a("s_barrier")
    if TS: a("s_memtime s[58:59]")
    for x in addr_upd(): a(x)
    for x in rd_adv(): a(x)
    for x in reads(0, 0): a(x)
    nm = MB * NB
    def body(do_dma, vm, last):
        a("s_waitcnt lgkmcnt(0)")
        rd = pf_list() + reads(1, 1) if not last else reads(1, 1)
        pg = PGS if nm <= 8 else max(1, -(-len(rd) // max(1, (nm * 2) // 3)))
        for x in interleave(mfmas(0), rd, pg): a(x)
        if last:
            a("s_waitcnt lgkmcnt(0)")
            for x in mfmas(1): a(x)
            return
        a("s_waitcnt lgkmcnt(0)")
        a("s_barrier")
        for x in addr_upd(): a(x)
        oth = reads(0, 0) + rd_adv()
        pg = PGS if nm <= 8 else max(1, -(-len(rd) // max(1, (nm * 2) // 3)))
        for x in interleave(mfmas(1), oth, pg): a(x)
    a("s_sub_u32 s24, s24, 1")
    a.label(L('loop'))
    body(False, 0, False)
    a("s_sub_u32 s24, s24, 1")
    a("s_cmp_lg_u32 s24, 0")
    a(f"s_cbranch_scc1 {L('loop')}")
    body(False, 0, True)
    if TS: a("s_memtime s[60:61]")
    a("s_nop 7"); a("s_nop 1")
    a("s_lshl_b32 s45, s33, 4")
    a("s_mov_b32 s46, 0")
    if omode == 'res':
        a("s_waitcnt vmcnt(0)")
        for mb in range(MB):
            for nb in range(0, NB, 2):
                r = vRes + (mb * NB + nb) * 2
                a(f"v_permlane16_swap_b32 v{r}, v{r+2}"); a(f"v_permlane16_swap_b32 v{r+1}, v{r+3}")
        a("s_nop 1")
    for mb in range(MB):
        st = []
        if omode == 'f32':
            for nb in range(NB):
                c = acc + (mb * NB + nb) * 4
                a(f"buffer_store_dwordx4 v[{c}:{c+3}], v{vO}, s[16:19], s46 offen offset:{nb*64}{STF}")
            a("s_add_u32 s46, s46, s45")
            continue
        for nb in range(NB):
            c = acc + (mb * NB + nb) * 4
            if omode == 'relu':
                for i in range(4): a(f"v_max_f32 v{c+i}, 0, v{c+i}")
            if omode == 'res':
                r = vRes + (mb * NB + nb) * 2
                a(f"v_lshlrev_b32 v{vT}, 16, v{r}"); a(f"v_and_b32 v{vT+1}, 0xffff0000, v{r}")
                a(f"v_lshlrev_b32 v{vT+2}, 16, v{r+1}"); a(f"v_and_b32 v{vT+3}, 0xffff0000, v{r+1}")
                for i in range(4): a(f"v_add_f32 v{c+i}, v{c+i}, v{vT+i}")
            d = c if (nb % 2 == 0) else c - 2
            a(f"v_cvt_pk_bf16_f32 v{d}, v{c}, v{c+1}")
            a(f"v_cvt_pk_bf16_f32 v{d+1}, v{c+2}, v{c+3}")
        a("s_nop 1")
        for nb in range(0, NB - 1, 2):
            c = acc + (mb * NB + nb) * 4
            a(f"v_permlane16_swap_b32 v{c}, v{c+2}"); a(f"v_permlane16_swap_b32 v{c+1}, v{c+3}")
        for nb in range(0, NB - 1, 2):
            c = acc + (mb * NB + nb) * 4
            a(f"buffer_store_dwordx4 v[{c}:{c+3}], v{vO2}, s[16:19], s46 offen offset:{nb*32}{STF}")
        if NB % 2:
            c = acc + (mb * NB + NB - 1) * 4
            a(f"buffer_store_dwordx2 v[{c}:{c+1}], v{vO}, s[16:19], s46 offen offset:{(NB-1)*32}{STF}")
        a("s_add_u32 s46, s46, s45")
    if cfg.get('signal'):
        a("s_waitcnt vmcnt(0)")
        a("s_mov_b64 exec, 1")
        a(f"v_mov_b32 v{vT}, s71"); a(f"v_mov_b32 v{vT+1}, 1")
        a(f"buffer_atomic_add v{vT+1}, v{vT}, s[72:75], 0 offen sc1")
        a("s_waitcnt vmcnt(0)")
    if TS:
        a("s_waitcnt vmcnt(0)"); a("s_memtime s[62:63]"); a("s_memrealtime s[66:67]"); a("s_waitcnt lgkmcnt(0)")
        a(f"s_cmp_lg_u32 s70, {TSWG}"); a(f"s_cbranch_scc1 {L('end')}"); a("s_cmp_lg_u32 s29, 0"); a(f"s_cbranch_scc1 {L('end')}")
        a("s_sub_u32 s58, s58, s56"); a("s_sub_u32 s60, s60, s56"); a("s_sub_u32 s62, s62, s56"); a("s_sub_u32 s66, s66, s64")
        a("s_mov_b32 s70, 256"); a("s_mov_b32 s71, 0x00020000")
        a("s_mov_b32 s72, s68"); a("s_mov_b32 s73, s69"); a("s_mov_b32 s74, 256"); a("s_mov_b32 s75, 0x00020000")
        a("v_mov_b32 v4, s58"); a("v_mov_b32 v5, s60"); a("v_mov_b32 v6, s62"); a("v_mov_b32 v7, s66")
        a(f"v_mov_b32 v1, {cfg.get('tsoff', 0)}")
        a("buffer_store_dwordx4 v[4:7], v1, s[72:75], 0 offen"); a("s_waitcnt vmcnt(0)")
    a.label(L('end'))
    a("s_endpgm")
    extra = 0
    if cfg.get('stream'):
        a.label(L('stream'))
        extra = emit_stream(a, name, cfg['nwg'], cfg['stream'], 8, L('end'))
    cfg['extra'] = extra
    return nvgpr, NS * ST
```

```python
from gemm import srd
MB_ = 1 << 20
WS = dict(EE=0, OO=2*MB_, GT=4*MB_, HT=6*MB_, P=8*MB_, Q=12*MB_, HN=16*MB_, H=20*MB_, H1=24*MB_)

def wave_sum(a, regs):
    steps = ["row_shr:1 row_mask:0xf bank_mask:0xf bound_ctrl:0", "row_shr:2 row_mask:0xf bank_mask:0xf bound_ctrl:0",
             "row_shr:4 row_mask:0xf bank_mask:0xf bound_ctrl:0", "row_shr:8 row_mask:0xf bank_mask:0xf bound_ctrl:0",
             "row_bcast:15 row_mask:0xa bank_mask:0xf", "row_bcast:31 row_mask:0xc bank_mask:0xf"]
    for s in steps:
        a("s_nop 1")
        for r in regs: a(f"v_add_f32_dpp v{r}, v{r}, v{r} {s}")
    a("s_nop 1")

def unpack(a, dst, src, n):
    for i in range(n):
        a(f"v_and_b32 v{dst+2*i+1}, 0xffff0000, v{src+i}")
        a(f"v_lshlrev_b32 v{dst+2*i}, 16, v{src+i}")

def tree_sum(a, dst, regs):
    a(f"v_add_f32 v{dst}, v{regs[0]}, v{regs[1]}")
    for r in regs[2:]: a(f"v_add_f32 v{dst}, v{dst}, v{r}")

def ln_stats(a, rows, tmp, smean, srstd):
    n = len(rows)
    for j, r in enumerate(rows):
        a(f"v_add_f32 v{tmp+j}, v{r[0]}, v{r[1]}")
        for x in r[2:]: a(f"v_add_f32 v{tmp+j}, v{tmp+j}, v{x}")
    wave_sum(a, [tmp + j for j in range(n)])
    for j in range(n): a(f"v_readlane_b32 s{smean+j}, v{tmp+j}, 63")
    a("s_nop 1")
    for j in range(n):
        a(f"v_mov_b32 v{tmp+j}, s{smean+j}")
        a(f"v_mul_f32 v{tmp+j}, 0x3a800000, v{tmp+j}")
    for j, r in enumerate(rows):
        for x in r: a(f"v_sub_f32 v{x}, v{x}, v{tmp+j}")
    for j, r in enumerate(rows):
        a(f"v_mul_f32 v{tmp+j}, v{r[0]}, v{r[0]}")
        for x in r[1:]: a(f"v_fmac_f32 v{tmp+j}, v{x}, v{x}")
    wave_sum(a, [tmp + j for j in range(n)])
    for j in range(n): a(f"v_readlane_b32 s{srstd+j}, v{tmp+j}, 63")
    a("s_nop 1")
    for j in range(n):
        a(f"v_mov_b32 v{tmp+j}, s{srstd+j}")
        a(f"v_mul_f32 v{tmp+j}, 0x3a800000, v{tmp+j}")
        a(f"v_add_f32 v{tmp+j}, 0x3727c5ac, v{tmp+j}")
        a(f"v_rsq_f32 v{tmp+j}, v{tmp+j}")
    a("s_nop 0")
    for j, r in enumerate(rows):
        for x in r: a(f"v_mul_f32 v{x}, v{x}, v{tmp+j}")

def emit_prep(a, stream=None):
    a.label("prep_kernel")
    a("s_cmp_ge_u32 s2, 272"); a("s_cbranch_scc1 " + ("prep_stream" if stream else "prep_end"))
    a("s_load_dwordx2 s[4:5], s[0:1], 0"); a("s_load_dwordx2 s[6:7], s[0:1], 80")
    a("v_lshrrev_b32 v1, 6, v0"); a("v_and_b32 v0, 63, v0")
    a("v_readfirstlane_b32 s3, v1")
    a("s_lshl_b32 s20, s2, 2"); a("s_add_u32 s20, s20, s3")
    a("s_waitcnt lgkmcnt(0)")
    srd(a, 8, 4, 5, 4 * MB_)
    a("s_mul_i32 s21, s20, 1152")
    a("s_add_u32 s12, s6, s21"); a("s_addc_u32 s13, s7, 0")
    a("s_mov_b32 s14, 1152"); a("s_mov_b32 s15, 0x00020000")
    a("s_lshl_b32 s21, s20, 10"); a(f"s_add_u32 s21, s21, {WS['OO']}")
    a("s_add_u32 s16, s6, s21"); a("s_addc_u32 s17, s7, 0")
    a("s_mov_b32 s18, 1024"); a("s_mov_b32 s19, 0x00020000")
    a("v_lshlrev_b32 v1, 4, v0")
    a("s_cmp_ge_u32 s20, 1025"); a("s_cbranch_scc1 prep_zero")
    a("s_sub_u32 s22, 2048, s20"); a("s_and_b32 s22, s22, 2047")
    a("s_lshl_b32 s23, s20, 11"); a("s_lshl_b32 s24, s22, 11")
    a("v_sub_u32 v2, 2032, v1")
    a("v_sub_u32 v3, 2048, v1")
    a("buffer_load_dwordx4 v[4:7], v1, s[8:11], s23 offen")
    a("buffer_load_dwordx4 v[8:11], v2, s[8:11], s23 offen")
    a("buffer_load_dwordx4 v[12:15], v1, s[8:11], s24 offen")
    a("buffer_load_dwordx4 v[16:19], v2, s[8:11], s24 offen")
    a("v_add_u32 v22, s23, v3"); a("v_add_u32 v23, s24, v3")
    a("buffer_load_ushort v20, v22, s[8:11], 0 offen")
    a("buffer_load_ushort v21, v23, s[8:11], 0 offen")
    a("s_waitcnt vmcnt(0)")
    A1, B1, A2, B2 = 24, 32, 40, 48
    unpack(a, A1, 4, 4); unpack(a, B1, 8, 4); unpack(a, A2, 12, 4); unpack(a, B2, 16, 4)
    a("v_lshlrev_b32 v20, 16, v20"); a("v_lshlrev_b32 v21, 16, v21")
    r1 = list(range(A1, A1 + 16)); r2 = list(range(A2, A2 + 16))
    ln_stats(a, [r1, r2], 56, 26, 28)
    for j, c in enumerate([20, 21]):
        a(f"v_mov_b32 v58, s{26+j}")
        a(f"v_mul_f32 v58, 0x3a800000, v58")
        a(f"v_sub_f32 v{c}, v{c}, v58")
        a(f"v_mul_f32 v{c}, v{c}, v{56+j}")
    a("v_cmp_eq_u32 vcc, 0, v0"); a("s_nop 1")
    a("v_cndmask_b32 v20, v20, 0, vcc") if False else None
    a("v_mov_b32 v58, 0")
    a("v_cndmask_b32 v20, v20, v58, vcc"); a("v_cndmask_b32 v21, v21, v58, vcc")
    a("s_cmp_eq_u32 s20, s22"); a("s_cselect_b32 s25, 0, 1.0")
    for i in range(8):
        m1 = 20 if i == 0 else B1 + 8 - i
        m2 = 21 if i == 0 else B2 + 8 - i
        a(f"v_add_f32 v76, v{A1+i}, v{m1}"); a(f"v_sub_f32 v77, v{A1+i}, v{m1}")
        a(f"v_add_f32 v78, v{A2+i}, v{m2}"); a(f"v_sub_f32 v79, v{A2+i}, v{m2}")
        a(f"v_fma_f32 v{60+i}, s25, v78, v76"); a(f"v_sub_f32 v{68+i}, v77, v79")
    for i in range(4):
        a(f"v_cvt_pk_bf16_f32 v{80+i}, v{60+2*i}, v{61+2*i}")
        a(f"v_cvt_pk_bf16_f32 v{84+i}, v{68+2*i}, v{69+2*i}")
    a("buffer_store_dwordx4 v[80:83], v1, s[12:15], 0 offen")
    a("s_cmp_ge_u32 s20, 1024"); a("s_cbranch_scc1 prep_noO")
    a("buffer_store_dwordx4 v[84:87], v1, s[16:19], 0 offen")
    a.label("prep_noO")
    a(f"v_fma_f32 v76, s25, v{B2}, v{B1}"); a("s_nop 1")
    a("v_readlane_b32 s28, v76, 63"); a("s_nop 1")
    a("v_mov_b32 v76, s28"); a("v_cvt_pk_bf16_f32 v76, v76, v58")
    a("v_cndmask_b32 v88, v58, v76, vcc")
    a("v_mov_b32 v89, 0"); a("v_mov_b32 v90, 0"); a("v_mov_b32 v91, 0")
    a("buffer_store_dwordx4 v[88:91], v1, s[12:15], 0 offen offset:1024")
    a("s_endpgm")
    a.label("prep_zero")
    for i in range(4): a(f"v_mov_b32 v{4+i}, 0")
    a("buffer_store_dwordx4 v[4:7], v1, s[12:15], 0 offen")
    a("buffer_store_dwordx4 v[4:7], v1, s[12:15], 0 offen offset:1024")
    a.label("prep_end")
    a("s_endpgm")
    extra = 0
    if stream:
        from gemm import emit_stream
        a.label("prep_stream")
        extra = emit_stream(a, "prep", 272, stream, 4, "prep_end")
    return 96, extra

def emit_ln2(a, stream=None):
    a.label("ln2_kernel")
    a("s_cmp_ge_u32 s2, 512"); a("s_cbranch_scc1 " + ("ln2_stream" if stream else "ln2_end"))
    a("s_load_dwordx2 s[4:5], s[0:1], 0"); a("s_load_dwordx2 s[6:7], s[0:1], 80")
    a("v_lshrrev_b32 v1, 6, v0"); a("v_and_b32 v0, 63, v0")
    a("v_readfirstlane_b32 s3, v1")
    a("s_lshl_b32 s20, s2, 2"); a("s_add_u32 s20, s20, s3")
    a("s_sub_u32 s21, 2048, s20"); a("s_cmp_le_u32 s20, 1024")
    a("s_cselect_b32 s22, s20, s21")
    a("s_cselect_b32 s23, 1.0, -1.0")
    a("s_waitcnt lgkmcnt(0)")
    a("s_lshl_b32 s24, s20, 11")
    a("s_add_u32 s8, s4, s24"); a("s_addc_u32 s9, s5, 0"); a("s_mov_b32 s10, 2048"); a("s_mov_b32 s11, 0x00020000")
    a("s_mul_i32 s25, s22, 2304"); a(f"s_add_u32 s25, s25, {WS['P']}")
    a("s_add_u32 s12, s6, s25"); a("s_addc_u32 s13, s7, 0"); a("s_mov_b32 s14, 2304"); a("s_mov_b32 s15, 0x00020000")
    a("s_lshl_b32 s25, s22, 11"); a(f"s_add_u32 s25, s25, {WS['Q']}")
    a("s_add_u32 s16, s6, s25"); a("s_addc_u32 s17, s7, 0"); a("s_mov_b32 s18, 2048"); a("s_mov_b32 s19, 0x00020000")
    a(f"s_add_u32 s25, s24, {WS['H']}")
    a("s_add_u32 s28, s6, s25"); a("s_addc_u32 s29, s7, 0"); a("s_mov_b32 s30, 2048"); a("s_mov_b32 s31, 0x00020000")
    a(f"s_add_u32 s25, s24, {WS['HN']}")
    a("s_add_u32 s32, s6, s25"); a("s_addc_u32 s33, s7, 0"); a("s_mov_b32 s34, 2048"); a("s_mov_b32 s35, 0x00020000")
    a("v_lshlrev_b32 v1, 4, v0")
    a("v_lshlrev_b32 v2, 5, v0")
    a("v_sub_u32 v3, 2020, v2")
    a("buffer_load_dwordx4 v[4:7], v1, s[8:11], 0 offen")
    a("buffer_load_dwordx4 v[8:11], v1, s[8:11], 0 offen offset:1024")
    PA, QA, PB, QB = 12, 20, 28, 36
    a(f"buffer_load_dwordx4 v[{PA}:{PA+3}], v2, s[12:15], 0 offen")
    a(f"buffer_load_dwordx4 v[{PA+4}:{PA+7}], v2, s[12:15], 0 offen offset:16")
    a(f"buffer_load_dwordx4 v[{QA}:{QA+3}], v2, s[16:19], 0 offen")
    a(f"buffer_load_dwordx4 v[{QA+4}:{QA+7}], v2, s[16:19], 0 offen offset:16")
    a(f"buffer_load_dwordx4 v[{PB}:{PB+3}], v3, s[12:15], 0 offen")
    a(f"buffer_load_dwordx4 v[{PB+4}:{PB+7}], v3, s[12:15], 0 offen offset:16")
    a(f"buffer_load_dwordx4 v[{QB}:{QB+3}], v3, s[16:19], 0 offen")
    a(f"buffer_load_dwordx3 v[{QB+4}:{QB+6}], v3, s[16:19], 0 offen offset:16")
    a(f"buffer_load_dword v{QB+7}, v3, s[16:19], 0 offen offset:28")
    a("s_waitcnt vmcnt(0)")
    XA, XB = 44, 52
    unpack(a, XA, 4, 4); unpack(a, XB, 8, 4)
    HH = 60
    for i in range(8):
        a(f"v_fma_f32 v{PA+i}, -v{QA+i}, s23, v{PA+i}")
        a(f"v_fma_f32 v{PB+i}, v{QB+i}, s23, v{PB+i}")
    for i in range(8):
        a(f"v_add_f32 v{HH+i}, v{XA+i}, v{PA+i}")
        a(f"v_add_f32 v{HH+8+i}, v{XB+i}, v{PB+7-i}")
    for i in range(8): a(f"v_cvt_pk_bf16_f32 v{76+i}, v{HH+2*i}, v{HH+2*i+1}")
    a("buffer_store_dwordx4 v[76:79], v1, s[28:31], 0 offen")
    a("buffer_store_dwordx4 v[80:83], v1, s[28:31], 0 offen offset:1024")
    unpack(a, HH, 76, 8)
    ln_stats(a, [list(range(HH, HH + 16))], 84, 26, 27)
    for i in range(8): a(f"v_cvt_pk_bf16_f32 v{88+i}, v{HH+2*i}, v{HH+2*i+1}")
    a("buffer_store_dwordx4 v[88:91], v1, s[32:35], 0 offen")
    a("buffer_store_dwordx4 v[92:95], v1, s[32:35], 0 offen offset:1024")
    a.label("ln2_end")
    a("s_endpgm")
    extra = 0
    if stream:
        from gemm import emit_stream
        a.label("ln2_stream")
        extra = emit_stream(a, "ln2", 512, stream, 4, "ln2_end")
    return 96, extra
```

```python
import sys, os
from gemm import Asm, emit_gemm, KARG
from rowk import emit_prep, emit_ln2, WS, MB_
NAME = "sequential_preLN__spectral_fnet__dense_activation_relu__prompt"

def add64(a, d, b, off):
    a(f"s_add_u32 s{d}, s{b}, {off}"); a(f"s_addc_u32 s{d+1}, s{b+1}, 0")

def divmod_c(a, q, r, x, d):
    m = -(-65536 // d)
    a(f"s_mul_i32 s{q}, s{x}, {m}"); a(f"s_lshr_b32 s{q}, s{q}, 16")
    a(f"s_mul_i32 s{r}, s{q}, {d}"); a(f"s_sub_u32 s{r}, s{x}, s{r}")

def small_setup(probs, BM, BN, esz):
    def f(a, L):
        p0, p1 = probs
        a("s_lshr_b32 s51, s2, 3"); a("s_and_b32 s50, s2, 3"); a("s_bitcmp1_b32 s2, 2")
        a(f"s_cbranch_scc1 {L('p1')}")
        for i, p in enumerate(probs):
            if i == 1:
                a.label(L('p1'))
            C = -(-p['n'] // 4)
            a(f"s_cmp_ge_u32 s51, {C}"); a(f"s_cbranch_scc1 {L('end')}")
            a(f"s_mul_i32 s2, s50, {C}"); a("s_add_u32 s2, s2, s51")
            a(f"s_cmp_ge_u32 s2, {p['n']}"); a(f"s_cbranch_scc1 {L('end')}")
            if p['X'][0] is not None: a(f"s_load_dwordx2 s[4:5], s[0:1], {KARG[p['X'][0]]}")
            if p['W'][0] is not None: a(f"s_load_dwordx2 s[6:7], s[0:1], {KARG[p['W'][0]]}")
            divmod_c(a, 50, 51, 2, p['nN'])
            a(f"s_mov_b32 s31, {p['ldx']}"); a(f"s_mov_b32 s32, {p['ldw']}"); a(f"s_mov_b32 s33, {p['ldo']}")
            a(f"s_mov_b32 s24, {p['KT']}")
            a("s_waitcnt lgkmcnt(0)")
            a(f"s_mul_i32 s52, s50, {BM*p['ldx']}")
            a(f"s_sub_u32 s42, {p['xsize']}, s52")
            if p['X'][0] is None:
                a(f"s_add_u32 s52, s52, {p['X'][1]}"); add64(a, 4, 40, "s52")
            else: add64(a, 4, 4, "s52")
            a(f"s_mul_i32 s52, s51, {BN*p['ldw']}")
            a(f"s_sub_u32 s43, {p['wsize']}, s52")
            if p['W'][0] is None:
                a(f"s_add_u32 s52, s52, {p['W'][1]}"); add64(a, 6, 40, "s52")
            else: add64(a, 6, 6, "s52")
            a(f"s_mul_i32 s52, s50, {BM*p['ldo']}")
            a(f"s_mul_i32 s53, s51, {BN*esz}")
            a("s_add_u32 s52, s52, s53")
            a(f"s_sub_u32 s44, {p['osize']}, s52")
            a(f"s_add_u32 s52, s52, {p['O']}"); add64(a, 36, 40, "s52")
            if i == 0: a(f"s_branch {L('go')}")
        a.label(L('go'))
    return f

H1P = 7168
HNP = 2048
def big_setup(which):
    def f(a, L):
        a("s_and_b32 s50, s2, 7"); a("s_lshr_b32 s51, s2, 3")
        if which == 1:
            a("s_and_b32 s52, s50, 1"); a("s_lshl_b32 s52, s52, 3"); a("s_and_b32 s53, s51, 7"); a("s_add_u32 s54, s52, s53")
            a("s_lshr_b32 s52, s50, 1"); a("s_lshl_b32 s52, s52, 2"); a("s_lshr_b32 s53, s51, 3"); a("s_add_u32 s55, s52, s53")
            BM, BN, ldx, ldw, ldo, KT = 128, 224, HNP, 7168, H1P, 16
            a(f"s_load_dwordx2 s[6:7], s[0:1], {KARG['w1']}")
            xoff, xsz, wsz, osz = WS['HN'], 2048 * HNP, 1024 * 7168, 2048 * H1P
        else:
            a("s_and_b32 s52, s50, 3"); a("s_lshl_b32 s52, s52, 2"); a("s_and_b32 s53, s51, 3"); a("s_add_u32 s54, s52, s53")
            a("s_lshr_b32 s52, s50, 2"); a("s_lshl_b32 s52, s52, 3"); a("s_lshr_b32 s53, s51, 2"); a("s_add_u32 s55, s52, s53")
            BM, BN, ldx, ldw, ldo, KT = 128, 64, H1P, 2048, 2048, 56
            a(f"s_load_dwordx2 s[6:7], s[0:1], {KARG['w2']}")
            a(f"s_load_dwordx2 s[36:37], s[0:1], {KARG['out']}")
            xoff, xsz, wsz, osz = WS['H1'], 2048 * H1P, 3584 * 2048, 4 * MB_
        a(f"s_mov_b32 s31, {ldx}"); a(f"s_mov_b32 s32, {ldw}"); a(f"s_mov_b32 s33, {ldo}"); a(f"s_mov_b32 s24, {KT}")
        a("s_waitcnt lgkmcnt(0)")
        a(f"s_mul_i32 s52, s54, {BM*ldx}"); a(f"s_sub_u32 s42, {xsz}, s52")
        a(f"s_add_u32 s52, s52, {xoff}"); add64(a, 4, 40, "s52")
        a(f"s_mul_i32 s52, s55, {BN*2}"); a(f"s_sub_u32 s43, {wsz}, s52"); add64(a, 6, 6, "s52")
        a(f"s_mul_i32 s52, s54, {BM*ldo}"); a(f"s_mul_i32 s53, s55, {BN*2}"); a("s_add_u32 s52, s52, s53")
        a(f"s_sub_u32 s44, {osz}, s52")
        if which == 1:
            a(f"s_add_u32 s52, s52, {WS['H1']}"); add64(a, 36, 40, "s52")
        else:
            add64(a, 36, 36, "s52")
            a(f"s_add_u32 s52, s52, {WS['H']}"); add64(a, 38, 40, "s52")
    return f

def pf_lanes(which):
    def f(a, vPF, t1, t2, t3):
        if which == 1:
            a("s_lshr_b32 s45, s51, 3"); a("s_lshl_b32 s45, s45, 5")
            a(f"v_add_u32 v{t1}, s45, v0"); a(f"v_mul_lo_u32 v{t1}, v{t1}, s31")
            a(f"v_mov_b32 v{t3}, 0xf0000000")
            a(f"v_cmp_gt_u32 vcc, 32, v0"); a(f"v_cndmask_b32 v{t1}, v{t3}, v{t1}, vcc")
            a("s_and_b32 s45, s51, 7"); a("s_lshl_b32 s45, s45, 3")
            a(f"v_lshrrev_b32 v{t2}, 3, v0"); a(f"v_add_u32 v{t2}, s45, v{t2}"); a(f"v_mul_lo_u32 v{t2}, v{t2}, s32")
            a(f"v_and_b32 v{vPF}, 7, v0"); a(f"v_cmp_gt_u32 vcc, 7, v{vPF}")
            a(f"v_lshl_add_u32 v{t2}, v{vPF}, 6, v{t2}"); a(f"v_cndmask_b32 v{t2}, v{t3}, v{t2}, vcc")
        else:
            a("s_lshr_b32 s45, s51, 2"); a("s_lshl_b32 s45, s45, 4")
            a(f"v_add_u32 v{t1}, s45, v0"); a(f"v_mul_lo_u32 v{t1}, v{t1}, s31")
            a("s_and_b32 s45, s51, 3"); a("s_lshl_b32 s45, s45, 4")
            a(f"v_add_u32 v{t2}, s45, v0"); a(f"v_mul_lo_u32 v{t2}, v{t2}, s32")
            a(f"v_mov_b32 v{t3}, 0xf0000000")
            a(f"v_cmp_gt_u32 vcc, 16, v0")
            a(f"v_cndmask_b32 v{t1}, v{t3}, v{t1}, vcc"); a(f"v_cndmask_b32 v{t2}, v{t3}, v{t2}, vcc")
        a("s_cmp_eq_u32 s29, 0"); a("s_cselect_b64 vcc, -1, 0")
        a(f"v_cndmask_b32 v{vPF}, v{t2}, v{t1}, vcc")
        a("s_cmp_lt_u32 s29, 2"); a("s_cselect_b64 vcc, -1, 0")
        a(f"v_cndmask_b32 v{vPF}, v{t3}, v{vPF}, vcc")
    return f

def kernel_wrap(name, body, nv):
    nvr = (nv + 7) // 8 * 8
    hdr = f".globl {name}\n.p2align 8\n.type {name},@function\n"
    desc = f""".amdhsa_kernel {name}
  .amdhsa_next_free_vgpr {nvr}
  .amdhsa_next_free_sgpr 96
  .amdhsa_accum_offset {max(4,(nvr+3)//4*4)}
  .amdhsa_group_segment_fixed_size 0
  .amdhsa_kernarg_size 88
  .amdhsa_user_sgpr_count 2
  .amdhsa_user_sgpr_kernarg_segment_ptr 1
  .amdhsa_system_sgpr_workgroup_id_x 1
.end_amdhsa_kernel
"""
    return hdr + body, desc

def build(opts):
    global H1P
    H1P = opts.get('h1p', 7168)
    import gemm; gemm.NOK = opts.get('nok', 0); gemm.PGS = opts.get('pgs', 2); gemm.SLP = opts.get('slp', 4); gemm.NOINV = opts.get('noinv', 0); gemm.STF = ['', ' nt', ' sc1', ' sc0 sc1'][opts.get('stf', 0)]; gemm.TS = opts.get('ts', 0); gemm.TSWG = opts.get('tswg', 0)
    ks = []
    SM = opts.get('SM', 7)
    R1 = opts.get('R1', 3); R2 = opts.get('R2', 8)
    dft = [(KARG['wd_re'], 576, 2048, 2, 2*R1, 2*MB_), (KARG['wd_im'], 576, 2048, 2, 2*R1, 2*MB_), (KARG['ws_re'], 1056, 4096, 3, R1, 8*MB_), (KARG['ws_im'], 1056, 4096, 2, R1, 8*MB_)]
    wseg = lambda k: [(KARG[k], 7168, 1024, 1, R2, 7168*1024)]
    PL = dict(wd=opts.get('pwd', 9), ws=opts.get('pws', 1), w1=opts.get('pw1', 0), w2=opts.get('pw2', 2))
    SG = dict(wd=dft[:2], ws=dft[2:], w1=wseg('w1'), w2=wseg('w2'))
    def strm(k):
        o = []
        for n in ('wd', 'ws', 'w1', 'w2'):
            if PL[n] == k: o += SG[n]
        return o or None
    a = Asm(); nv, ex = emit_prep(a, strm(0)); ks.append(("prep_kernel", a.text(), nv, 272 + ex, 0))
    NSs = opts.get('NSs', 4)
    pa = [dict(n=102, nN=17, X=('wd_re', 0), ldx=2048, xsize=2*MB_, W=(None, WS['EE']), ldw=1152, wsize=1088*1152, O=WS['GT'], ldo=2176, osize=576*2176, KT=9),
          dict(n=96, nN=16, X=('wd_im', 0), ldx=2048, xsize=2*MB_, W=(None, WS['OO']), ldw=1024, wsize=1024*1024, O=WS['HT'], ldo=2048, osize=576*2048, KT=8)]
    cf = dict(stream=strm(1), name='ga', tsoff=0, BM=96, BN=64, WM=2, WN=2, NS=NSs, wmode='kc', out='bf16', nwg=208, setup=small_setup(pa, 96, 64, 2))
    a = Asm(); nv, lds = emit_gemm(a, cf)
    ks.append(("ga_kernel", a.text(), nv, 208 + cf['extra'], lds))
    pb = [dict(n=99, nN=9, X=('ws_re', 0), ldx=4096, xsize=8*MB_, W=(None, WS['GT']), ldw=2176, wsize=576*2176, O=WS['P'], ldo=2304, osize=1056*2304, KT=17),
          dict(n=88, nN=8, X=('ws_im', 0), ldx=4096, xsize=8*MB_, W=(None, WS['HT']), ldw=2048, wsize=576*2048, O=WS['Q'], ldo=2048, osize=1056*2048, KT=16)]
    cf = dict(stream=strm(2), name='gb', tsoff=16, BM=96, BN=64, WM=2, WN=2, NS=NSs, wmode='kc', out='f32', nwg=200, setup=small_setup(pb, 96, 64, 4))
    a = Asm(); nv, lds = emit_gemm(a, cf)
    ks.append(("gb_kernel", a.text(), nv, 200 + cf['extra'], lds))
    a = Asm(); nv, ex = emit_ln2(a, strm(3)); ks.append(("ln2_kernel", a.text(), nv, 512 + ex, 0))
    FU = opts.get('FU', 0)
    c1 = dict(name='g1', tsoff=32, BM=128, BN=224, WM=2, WN=2, NS=3, wmode='nc', out='relu', nwg=256, setup=big_setup(1))
    c2 = dict(name='g2', tsoff=48, BM=128, BN=64, WM=2, WN=2, NS=opts.get('NS2', 6), wmode='nc', out='res', nwg=256, setup=big_setup(2))
    if FU:
        c1.update(pre=["g12_kernel:", "s_cmp_ge_u32 s2, 256", "s_cbranch_scc1 g2_entry"], signal=True, stf=' sc1')
        c2.update(pre=["g2_entry:", "s_sub_u32 s2, s2, 256"], wait=64)
        a = Asm(); nv1, lds1 = emit_gemm(a, c1); nv2, lds2 = emit_gemm(a, c2)
        ks.append(("g12_kernel", a.text(), max(nv1, nv2), 512, max(lds1, lds2)))
    else:
        a = Asm(); nv, lds = emit_gemm(a, c1); ks.append(("g1_kernel", a.text(), nv, 256, lds))
        a = Asm(); nv, lds = emit_gemm(a, c2); ks.append(("g2_kernel", a.text(), nv, 256, lds))
    sel = opts.get('only')
    ref = open(f"cdna_kernels/{NAME}.s.ref").read().split("\n")
    hdr = [l for l in ref if l.startswith(";") and "@launch" not in l and "Override" not in l and "grid=ceil" not in l]
    hdr = hdr[:12]
    out = "\n".join(hdr) + "\n"
    for (n, _, nv, g, lds) in ks:
        if sel and n not in sel: continue
        out += f"; @launch kernel={n} grid=({g},1,1) block=({512 if n in ('ga_kernel','gb_kernel','g1_kernel','g2_kernel','g12_kernel') else 256},1,1) lds={lds}\n"
    out += '.amdgcn_target "amdgcn-amd-amdhsa--gfx950"\n.text\n'
    descs = ""
    for (n, body, nv, g, lds) in ks:
        t, d = kernel_wrap(n, body, nv); out += t; descs += d.replace(".amdhsa_kernel", ".p2align 6\n.amdhsa_kernel", 1)
    out += '.section .rodata,"a"\n' + descs
    return out

if __name__ == "__main__":
    opts = {}
    for x in sys.argv[2:]:
        k, v = x.split("=")
        opts[k] = v.split(",") if k == 'only' else int(v)
    open(sys.argv[1], "w").write(build(opts))
```
